```python
import torch

def _softmax(x, axis=-1):
    return torch.softmax(x, dim=axis)
def _gelu(x):
    return torch.nn.functional.gelu(x, approximate="tanh")
def _silu(x):
    return torch.nn.functional.silu(x)
def _sigmoid(x):
    return torch.sigmoid(x)
def _layernorm(x, axis=-1, eps=1e-5):
    m = x.mean(dim=axis, keepdim=True)
    v = x.var(dim=axis, keepdim=True, unbiased=False)
    return (x - m) / torch.sqrt(v + eps)
def _scatter_add(tgt, idx, src, axis=0):
    return tgt.clone().index_add_(axis, idx, src)
def _segment_sum(src, seg, n):
    out = torch.zeros((n,) + src.shape[1:], dtype=src.dtype)
    return out.index_add_(0, seg, src)
def _pad(x, pw):
    flat = tuple(v for pair in reversed(pw) for v in pair)
    return torch.nn.functional.pad(x, flat)

kernel_name = 'interleave_layers__softmax_full_mha__glu_gated_glu__prompt'

def setup_inputs():

    _w = (lambda a: (lambda t: t.to(torch.bfloat16) if t.is_floating_point() else t)(torch.as_tensor(a)))
    def _A_setup():
        B, S, D = 1, 2048, 448
        return {
            "x": _w((lambda *s: torch.randn(*s, dtype=torch.bfloat16) * 0.05)(B, S, D)),
            "wqkv": _w((lambda *s: torch.randn(*s, dtype=torch.bfloat16) * 0.05)(D, 3 * D)),
            "wo": _w((lambda *s: torch.randn(*s, dtype=torch.bfloat16) * 0.05)(D, D)),
        }
    _A_in = _A_setup()

    def _B_setup():
        B, S, D, F = 1, 2048, 448, 1792
        return {
            "x": _w((lambda *s: torch.randn(*s, dtype=torch.bfloat16) * 0.05)(B, S, D)),
            "w_gate": _w((lambda *s: torch.randn(*s, dtype=torch.bfloat16) * 0.05)(D, F)),
            "w_up": _w((lambda *s: torch.randn(*s, dtype=torch.bfloat16) * 0.05)(D, F)),
            "w_down": _w((lambda *s: torch.randn(*s, dtype=torch.bfloat16) * 0.05)(F, D)),
        }
    _B_in = _B_setup()

    return {
        "A_x": _A_in["x"],
        "A_wqkv": _A_in["wqkv"],
        "A_wo": _A_in["wo"],
        "B_x": _B_in["x"],
        "B_w_gate": _B_in["w_gate"],
        "B_w_up": _B_in["w_up"],
        "B_w_down": _B_in["w_down"],
    }

def reference(A_x, A_wqkv, A_wo, B_x, B_w_gate, B_w_up, B_w_down):
    def _A_ref(x, wqkv, wo):
        B, S, D = x.shape
        H = 16; Dh = D // H
        qkv = (lambda x, *d: x.permute(*d))((x @ wqkv).reshape(B, S, 3, H, Dh), 2, 0, 3, 1, 4)
        q, k, v = qkv[0], qkv[1], qkv[2]
        scale = Dh ** -0.5
        scores = torch.einsum("bhqd,bhkd->bhqk", q, k) * scale
        p = _softmax(scores, axis=-1)
        o = torch.einsum("bhqk,bhkd->bhqd", p, v)
        return (lambda x, *d: x.permute(*d))(o, 0, 2, 1, 3).reshape(B, S, D) @ wo

    def _B_ref(x, w_gate, w_up, w_down):
        g = torch.einsum("bsd,df->bsf", x, w_gate)
        u = torch.einsum("bsd,df->bsf", x, w_up)
        h = _sigmoid(g) * u
        return torch.einsum("bsf,fd->bsd", h, w_down)

    x = A_x
    x = x + _A_ref(_layernorm(x, axis=-1), A_wqkv, A_wo)
    x = x + _B_ref(_layernorm(x, axis=-1), B_w_gate, B_w_up, B_w_down)
    x = x + _A_ref(_layernorm(x, axis=-1), A_wqkv, A_wo)
    x = x + _B_ref(_layernorm(x, axis=-1), B_w_gate, B_w_up, B_w_down)
    return x
```

```python
from common import *
FORCE_FALLBACK=False
Q=8; O=24; S=(56,72); P=(88,96); RING=104
FLAG=65536; MX=65536+64
def gen(e):
    e.kernel('attn_kernel')
    e(f'''s_load_dwordx2 s[18:19], s[0:1], 72
    s_cmp_ge_u32 s2, 256
    s_cbranch_scc1 attn_end
    v_lshrrev_b32 v1, 6, v0
    v_and_b32 v2, 63, v0
    v_readfirstlane_b32 s20, v1
    v_lshlrev_b32 v2, 4, v2
    s_and_b32 s4, s2, 7
    s_lshr_b32 s5, s2, 3
    s_lshr_b32 s6, s5, 4
    s_lshl_b32 s4, s4, 1
    s_add_u32 s21, s4, s6
    s_and_b32 s22, s5, 15
    s_and_b32 s8, s20, 1
    s_lshr_b32 s9, s20, 1
    s_lshl_b32 s10, s22, 2
    s_lshl_b32 s11, s8, 1
    s_add_u32 s10, s10, s11
    s_lshl_b32 s11, s21, 6
    s_add_u32 s12, s11, s10
    s_lshl_b32 s12, s12, 11
    s_add_u32 s12, s12, {QB}
    s_lshl_b32 s13, s11, 12
    s_add_u32 s13, s13, {KVB}
    s_lshl_b32 s14, s9, 16
    s_add_u32 s14, s14, s13
    s_mov_b32 s28, 0
    s_mov_b32 s29, -1
    s_mov_b32 s52, 0
    v_mov_b32 v3, 0
    v_mov_b32 v4, {FLAG}
    s_waitcnt lgkmcnt(0)''')
    e.srd(24,18,WS_BYTES)
    for q in range(4): e(f'buffer_load_dwordx4 {R(Q+4*q)}, v2, s[24:27], s12 offen offset:{q*1024}')
    e(f'buffer_load_dwordx4 {R(152)}, v2, s[24:27], s13 offen\nbuffer_load_dwordx4 {R(156)}, v2, s[24:27], s13 offen offset:1024')
    vm=VM(e)
    def ring(kb,q): return RING+16*(kb%3)+4*q
    def issue(kb):
        for q in range(4):
            e(f'buffer_load_dwordx4 {R(ring(kb,q))}, v2, s[24:27], s15 offen offset:{q*1024}'); vm.issue(kb)
        e('s_add_u32 s15, s15, 4096')
    e('s_mov_b32 s15, s14')
    for kb in range(3): issue(kb)
    e('ds_write_b32 v4, v3\ns_waitcnt vmcnt(12)')
    for t in range(2):
        e(f'v_mfma_f32_32x32x16_bf16 {R(S[t],16)}, {R(152)}, {R(Q+8*t)}, 0\nv_mfma_f32_32x32x16_bf16 {R(S[t],16)}, {R(156)}, {R(Q+8*t+4)}, {R(S[t],16)}')
    e('s_waitcnt lgkmcnt(0)\ns_barrier\ns_nop 10')
    for t in range(2):
        s=S[t]
        e(f'v_max3_f32 v{5+t}, v{s}, v{s+1}, v{s+2}')
        for r in range(3,15,2): e(f'v_max3_f32 v{5+t}, v{5+t}, v{s+r}, v{s+r+1}')
        e(f'v_max_f32 v{5+t}, v{5+t}, v{s+15}')
    e('v_mov_b32 v3, v5\nv_mov_b32 v7, v6\ns_nop 1\nv_permlane32_swap_b32 v5, v3\nv_permlane32_swap_b32 v6, v7\ns_nop 1')
    e('v_max_f32 v5, v5, v3\nv_max_f32 v6, v6, v7\nv_cvt_pk_bf16_f32 v5, -v5, 0\nv_cvt_pk_bf16_f32 v6, -v6, 0')
    e(f'v_cndmask_b32 v{Q+6}, v{Q+6}, v5, s[28:29]\nv_cndmask_b32 v{Q+14}, v{Q+14}, v6, s[28:29]')
    e('attn_main:')
    def qk(t,h):
        kb=t//2; tb=t%2; s=S[t%2]
        c='0' if h==0 else R(s,16)
        e(f'v_mfma_f32_32x32x16_bf16 {R(s,16)}, {R(ring(kb,h))}, {R(Q+8*tb+4*h)}, {c}')
    def pv(t,h):
        kb=t//2; tb=t%2; o=O+16*tb
        c='0' if (kb==0 and h==0) else R(o,16)
        e(f'v_mfma_f32_32x32x16_bf16 {R(o,16)}, {R(ring(kb,2+h))}, {R(P[t%2]+4*h)}, {c}')
    def ex(t,a,b):
        for r in range(a,b): e(f'v_exp_f32 v{S[t%2]+r}, v{S[t%2]+r}')
    def cv(t,a,b):
        for q in range(a,b): e(f'v_cvt_pk_bf16_f32 v{P[t%2]+q}, v{S[t%2]+2*q}, v{S[t%2]+2*q+1}')
    vm.wait(0); e('s_nop 1'); qk(0,0); qk(0,1); e('s_nop 10')
    NT=32
    for t in range(NT):
        if t+1<NT:
            if (t+1)%2==0: vm.wait((t+1)//2)
            qk(t+1,0)
        ex(t,0,4)
        if t+1<NT: qk(t+1,1)
        ex(t,4,8); cv(t,0,2)
        if t>0: pv(t-1,1)
        if t%2==0 and t>=2 and t//2+2<16: issue(t//2+2)
        ex(t,8,12); cv(t,2,4); ex(t,12,14)
        pv(t,0)
        ex(t,14,16); cv(t,4,8)
    e('s_nop 1'); pv(NT-1,1)
    e('s_lshl_b32 s4, s20, 13\nv_add_u32 v3, s4, v2\ns_nop 9')
    for q in range(8): e(f'ds_write_b128 v3, {R(O+4*q)} offset:{q*1024}')
    e(f'''s_lshl_b32 s4, s8, 13
    s_lshl_b32 s5, s9, 11
    s_add_u32 s5, s5, s4
    v_add_u32 v3, s5, v2
    s_lshr_b32 s6, s9, 1
    s_lshl_b32 s7, s6, 12
    s_add_u32 s7, s7, s4
    s_add_u32 s7, s7, {3072+512}
    v_and_b32 v5, 31, v0
    v_lshl_add_u32 v5, v5, 4, s7
    s_waitcnt lgkmcnt(0)
    s_barrier''')
    for k in range(4): e(f'ds_read_b32 v{152+k}, v5 offset:{k*16384}')
    for k in range(4):
        e(f'ds_read_b128 {R(56+8*k)}, v3 offset:{k*16384}\nds_read_b128 {R(60+8*k)}, v3 offset:{k*16384+1024}')
    e(f'''s_add_u32 s6, s6, s10
    s_lshl_b32 s6, s6, 5
    s_lshl_b32 s7, s21, 1
    s_add_u32 s6, s6, s7
    s_and_b32 s7, s9, 1
    s_add_u32 s6, s6, s7
    s_lshl_b32 s6, s6, 10
    s_add_u32 s6, s6, {OF}
    s_waitcnt lgkmcnt(8)
    v_add_f32 v152, v152, v153
    v_add_f32 v154, v154, v155
    v_add_f32 v152, v152, v154
    s_cmp_eq_u32 s52, 1
    s_cbranch_scc1 attn_fin
    v_cmp_nle_f32 vcc, 0x30800000, v152
    v_cmp_nge_f32 s[30:31], {'0.5' if FORCE_FALLBACK else 's53'}, v152'''.replace('v_cmp_nge_f32 s[30:31], s53','s_mov_b32 s53, 0x4e800000\nv_cmp_nge_f32 s[30:31], s53'))
    e(f'''s_or_b64 vcc, vcc, s[30:31]
    s_cbranch_vccz attn_ok
    v_mov_b32 v6, 1
    ds_write_b32 v4, v6
    attn_ok:
    s_waitcnt lgkmcnt(0)
    s_barrier
    ds_read_b32 v6, v4
    s_waitcnt lgkmcnt(0)
    v_readfirstlane_b32 s4, v6
    s_cmp_lg_u32 s4, 0
    s_cbranch_scc1 attn_fb
    attn_fin:
    v_rcp_f32 v152, v152
    s_waitcnt lgkmcnt(0)''')
    for r in range(8): e(f'v_add_f32 v{56+r}, v{56+r}, v{64+r}\nv_add_f32 v{72+r}, v{72+r}, v{80+r}')
    for r in range(8): e(f'v_add_f32 v{56+r}, v{56+r}, v{72+r}')
    for r in range(8): e(f'v_mul_f32 v{56+r}, v{56+r}, v152')
    for q in range(4): e(f'v_cvt_pk_bf16_f32 v{64+q}, v{56+2*q}, v{57+2*q}')
    e('buffer_store_dwordx4 v[64:67], v2, s[24:27], s6 offen\ns_endpgm')
    e(f'''attn_fb:
    s_mov_b32 s52, 1
    v_mov_b32 v3, 0
    v_mov_b32 v5, 0xff800000
    v_mov_b32 v6, 0xff800000
    v_cndmask_b32 v{Q+6}, v{Q+6}, v3, s[28:29]
    v_cndmask_b32 v{Q+14}, v{Q+14}, v3, s[28:29]
    s_mov_b32 s15, s14
    s_mov_b32 s4, 16
    attn_fbl:
    buffer_load_dwordx4 {R(152)}, v2, s[24:27], s15 offen
    buffer_load_dwordx4 {R(156)}, v2, s[24:27], s15 offen offset:1024
    s_add_u32 s15, s15, 4096
    s_waitcnt vmcnt(0)''')
    for t in range(2):
        e(f'v_mfma_f32_32x32x16_bf16 {R(S[t],16)}, {R(152)}, {R(Q+8*t)}, 0\nv_mfma_f32_32x32x16_bf16 {R(S[t],16)}, {R(156)}, {R(Q+8*t+4)}, {R(S[t],16)}')
    e('s_nop 15')
    for t in range(2):
        for r in range(0,16,2): e(f'v_max3_f32 v{5+t}, v{5+t}, v{S[t]+r}, v{S[t]+r+1}')
    e(f'''s_sub_u32 s4, s4, 1
    s_cmp_lg_u32 s4, 0
    s_cbranch_scc1 attn_fbl
    v_mov_b32 v3, v5
    v_mov_b32 v7, v6
    s_nop 1
    v_permlane32_swap_b32 v5, v3
    v_permlane32_swap_b32 v6, v7
    s_nop 1
    v_max_f32 v5, v5, v3
    v_max_f32 v6, v6, v7
    v_and_b32 v3, 31, v0
    v_lshlrev_b32 v3, 2, v3
    s_lshl_b32 s4, s20, 8
    s_add_u32 s4, s4, {MX}
    v_add_u32 v7, s4, v3
    ds_write_b32 v7, v5
    ds_write_b32 v7, v6 offset:128
    s_lshl_b32 s4, s8, 8
    s_add_u32 s4, s4, {MX}
    v_add_u32 v7, s4, v3
    s_waitcnt lgkmcnt(0)
    s_barrier''')
    for t in range(2):
        for k in range(4): e(f'ds_read_b32 v{56+4*t+k}, v7 offset:{k*512+t*128}')
    e('s_waitcnt lgkmcnt(0)')
    for t in range(2):
        b=56+4*t
        e(f'''v_max3_f32 v{b}, v{b}, v{b+1}, v{b+2}
        v_max_f32 v{b}, v{b}, v{b+3}
        v_cvt_pk_bf16_f32 v{b+1}, -v{b}, 0
        v_lshlrev_b32 v{b+2}, 16, v{b+1}
        v_sub_f32 v{b}, -v{b}, v{b+2}
        v_cvt_pk_bf16_f32 v{b+2}, v{b}, 0
        v_lshlrev_b32 v{b+2}, 16, v{b+2}
        v_sub_f32 v{b}, v{b}, v{b+2}
        v_or_b32 v{b+1}, v{b+1}, v{b+2}
        v_cvt_pk_bf16_f32 v{b}, v{b}, 0
        v_cndmask_b32 v{Q+8*t+6}, v{Q+8*t+6}, v{b+1}, s[28:29]
        v_cndmask_b32 v{Q+8*t+7}, v{Q+8*t+7}, v{b}, s[28:29]''')
    e('s_mov_b32 s15, s14')
    for kb in range(3): issue(kb)
    e('s_branch attn_main\nattn_end:\ns_endpgm')
    e.kd('attn_kernel',160,160)
def launch(e): e.launch.append('; @launch kernel=attn_kernel grid=(256,1,1) block=(512,1,1) lds=67712')
```

```python
XF=[0x0,0x200000,0x400000,0x600000]
WQKV=0x800000; WO=0xA00000; WGU=0xC00000; WD=0x1000000
QB=0x1200000; KVB=0x1400000; OF=0x1800000; HF=0x1A00000
WS_BYTES=0x2400000
class E:
    def __init__(s): s.l=[]; s.kds=[]; s.launch=[]
    def __call__(s,t):
        for x in t.split('\n'):
            x=x.strip()
            if x: s.l.append(x if x.endswith(':') or x.startswith('.') else '  '+x)
    def kernel(s,name):
        s(f'.globl {name}\n.p2align 8\n.type {name},@function\n{name}:')
    def kd(s,name,vg,acc,sg=96):
        s.kds.append(f'''.p2align 6
.amdhsa_kernel {name}
  .amdhsa_next_free_vgpr {vg}
  .amdhsa_next_free_sgpr {sg}
  .amdhsa_accum_offset {acc}
  .amdhsa_group_segment_fixed_size 0
  .amdhsa_kernarg_size 80
  .amdhsa_user_sgpr_count 2
  .amdhsa_user_sgpr_kernarg_segment_ptr 1
  .amdhsa_system_sgpr_workgroup_id_x 1
.end_amdhsa_kernel''')
    def srd(s,r,p,n):
        s(f's_mov_b32 s{r}, s{p}\ns_and_b32 s{r+1}, s{p+1}, 0xffff\ns_mov_b32 s{r+2}, {n}\ns_mov_b32 s{r+3}, 0x20000')
def R(base,n=4):
    if base>=256:
        b=base-256; return f'a[{b}:{b+n-1}]' if n>1 else f'a{b}'
    return f'v[{base}:{base+n-1}]' if n>1 else f'v{base}'
class VM:
    def __init__(s,e): s.e=e; s.q=[]
    def issue(s,tag): s.q.append(tag)
    def wait(s,tag):
        idx=[i for i,t in enumerate(s.q) if t==tag]
        if not idx: return
        n=len(s.q)-1-idx[-1]
        assert n<=63
        s.e(f's_waitcnt vmcnt({n})'); s.q=s.q[idx[-1]+1:]
```

```python
from common import *
RSTD=114688
def gen(e,name,nW):
    gu = nW==2
    nWG = 224 if gu else 192
    NG = 7 if gu else 6
    magic = 37 if gu else 43
    wbase = WGU if gu else WQKV
    xs = (XF[1],XF[3]) if gu else (XF[0],XF[2])
    for L in (0,1):
        e.kernel(f'{name}{L}_kernel')
        e(f's_mov_b32 s40, {xs[L]}\ns_branch {name}_body')
        e.kd(f'{name}{L}_kernel',512 if gu else 256+112,256)
    e(f'''{name}_body:
    s_load_dwordx2 s[18:19], s[0:1], 72
    s_cmp_ge_u32 s2, {nWG}
    s_cbranch_scc1 {name}_end
    v_lshrrev_b32 v1, 6, v0
    v_and_b32 v2, 63, v0
    v_readfirstlane_b32 s20, v1
    v_lshlrev_b32 v2, 4, v2
    s_and_b32 s4, s2, 7
    s_lshr_b32 s5, s2, 3
    s_mul_i32 s6, s5, {magic}
    s_lshr_b32 s6, s6, 8
    s_mul_i32 s7, s6, {NG}
    s_sub_u32 s7, s5, s7
    s_lshr_b32 s8, s4, 1
    s_lshl_b32 s8, s8, 2
    s_add_u32 s21, s8, s6
    s_and_b32 s9, s4, 1
    s_mul_i32 s9, s9, {NG}
    s_add_u32 s22, s9, s7
    s_lshl_b32 s10, s21, 2
    s_add_u32 s10, s10, s20
    s_mul_i32 s41, s10, 28672
    s_add_u32 s41, s41, s40
    s_mul_i32 s42, s20, 28672
    s_lshl_b32 s11, s22, 2
    s_add_u32 s11, s11, s20
    s_mul_i32 s43, s11, {28672*nW}
    s_add_u32 s43, s43, {wbase}
    s_mov_b32 s44, 0x3f803f80
    s_waitcnt lgkmcnt(0)''')
    e.srd(24,18,WS_BYTES)
    ACC=48; XB=16
    def wreg(ks,u):
        f=ks*nW+u
        if not gu: return 256+4*f
        return 176+4*f if f<20 else 256+4*(f-20)
    vm=VM(e)
    def issue_stage(st):
        e(f's_add_u32 m0, s42, {st*4096}\ns_add_u32 s45, s41, {st*4096}')
        for q in range(4):
            e(f'buffer_load_dwordx4 v2, s[24:27], s45 offen offset:{q*1024} lds'); vm.issue(('x',st))
        for q in range(4*nW):
            if q%4==0: e(f's_add_u32 s45, s43, {st*4096*nW+q*1024}')
            ks=st*4+q//nW; u=q%nW
            e(f'buffer_load_dwordx4 {R(wreg(ks,u))}, v2, s[24:27], s45 offen offset:{(q%4)*1024}'); vm.issue(('w',ks))
    D=5 if gu else 7
    for st in range(D): issue_stage(st)
    nxt=D
    for j in range(4):
        e(f's_add_u32 s46, s20, {j}\ns_and_b32 s46, s46, 3\ns_mul_i32 s46, s46, 28672\nv_add_u32 v{4+j}, s46, v2')
    e('v_mov_b32 v8, 0\nv_mov_b32 v9, 0\nv_mov_b32 v10, 0\nv_mov_b32 v11, 0')
    def rd(ks):
        b=XB+16*(ks%2)
        for j in range(4): e(f'ds_read_b128 v[{b+4*j}:{b+4*j+3}], v{4+j} offset:{ks*1024}')
    def mainloop(swap,vm,nxt):
        vm.wait(('x',0)); e('s_barrier'); rd(0)
        for ks in range(28):
            if ks+1<28:
                if (ks+1)%4==0:
                    vm.wait(('x',(ks+1)//4)); e('s_barrier')
                    if nxt<7: issue_stage(nxt); nxt+=1
                rd(ks+1)
            vm.wait(('w',ks))
            e(f's_waitcnt lgkmcnt({4 if ks+1<28 else 0})')
            b=XB+16*(ks%2)
            dots=[]
            for q in range(4):
                dots.append(f'v_dot2_f32_bf16 v{8+q%2}, v{b+q}, s44, v{8+q%2}')
                dots.append(f'v_dot2_f32_bf16 v{10+q%2}, v{b+q}, v{b+q}, v{10+q%2}')
            n=0
            for j in range(4):
                for u in range(nW):
                    a=ACC+64*u+16*j
                    c='0' if ks==0 else R(a,16)
                    x=R(b+4*j); w=R(wreg(ks,u))
                    A,B=(x,w) if swap else (w,x)
                    e(f'v_mfma_f32_32x32x16_bf16 {R(a,16)}, {A}, {B}, {c}')
                    for _ in range(2//nW): e(dots.pop(0))
        e(f'''s_nop 2
        v_add_f32 v8, v8, v9
        v_add_f32 v10, v10, v11
        v_mov_b32 v9, v8
        v_mov_b32 v11, v10
        s_nop 1
        v_permlane32_swap_b32 v8, v9
        v_permlane32_swap_b32 v10, v11
        s_lshl_b32 s46, s20, 7
        s_add_u32 s46, s46, {RSTD}
        v_add_f32 v8, v8, v9
        v_add_f32 v10, v10, v11
        v_mul_f32 v8, 0x3b124925, v8
        v_mul_f32 v10, 0x3b124925, v10
        v_fma_f32 v10, -v8, v8, v10
        v_max_f32 v10, 0, v10
        v_add_f32 v10, 0x3727c5ac, v10
        v_rsq_f32 v10, v10
        v_and_b32 v12, 31, v0
        v_lshlrev_b32 v13, 2, v12
        v_add_u32 v14, s46, v13
        ds_write_b32 v14, v10
        s_waitcnt lgkmcnt(0)
        s_barrier''')
    def rstd_lane():
        for j in range(4):
            e(f's_add_u32 s46, s20, {j}\ns_and_b32 s{48+j}, s46, 3\ns_lshl_b32 s46, s{48+j}, 7\ns_add_u32 s46, s46, {RSTD}\nv_add_u32 v14, s46, v13\nds_read_b32 v{8+j}, v14')
        e('s_waitcnt lgkmcnt(0)')
    def pack_store(a,t,soff):
        for q in range(8): e(f'v_cvt_pk_bf16_f32 v{t+q}, v{a+2*q}, v{a+2*q+1}')
        return [f'buffer_store_dwordx4 v[{t}:{t+3}], v2, s[24:27], {soff} offen',f'buffer_store_dwordx4 v[{t+4}:{t+7}], v2, s[24:27], {soff} offen offset:1024']
    if gu:
        mainloop(False,vm,nxt); rstd_lane()
        for j in range(4):
            e(f'v_rcp_f32 v{4+j}, v{8+j}\nv_mul_f32 v{8+j}, 0xbfb8aa3b, v{8+j}')
        for j in range(4):
            G=ACC+16*j; U=ACC+64+16*j
            e(f's_lshl_b32 s46, s21, 2\ns_add_u32 s46, s46, s{48+j}\ns_mul_i32 s46, s46, 112\ns_lshl_b32 s47, s11, 1\ns_add_u32 s46, s46, s47\ns_lshl_b32 s46, s46, 10\ns_add_u32 s46, s46, {HF}')
            for r in range(16): e(f'v_mul_f32 v{G+r}, v{8+j}, v{G+r}')
            for r in range(16): e(f'v_exp_f32 v{G+r}, v{G+r}')
            for r in range(16): e(f'v_fma_f32 v{G+r}, v{G+r}, v{4+j}, v{4+j}')
            for r in range(16): e(f'v_rcp_f32 v{G+r}, v{G+r}')
            for r in range(16): e(f'v_mul_f32 v{U+r}, v{U+r}, v{G+r}')
            for s in pack_store(U,16+8*(j%4),'s46'): e(s)
        e('s_endpgm')
    else:
        import copy
        e(f's_cmp_ge_u32 s22, 8\ns_cbranch_scc1 {name}_v')
        vm2=VM(e); vm2.q=list(vm.q)
        mainloop(False,vm,nxt); rstd_lane()
        e(f'''s_and_b32 s12, s11, 15
        s_cmp_ge_u32 s22, 4
        s_cselect_b32 s13, 1.0, 0x3e8b97f6
        s_cselect_b32 s14, 0x3f803f80, 0
        s_cselect_b32 s15, 0x3f80, 0
        s_cselect_b32 s16, 12, 11
        s_mov_b32 s17, {QB}
        s_cselect_b32 s17, {KVB}, s17
        s_mov_b32 s28, 0
        s_mov_b32 s29, -1
        v_mov_b32 v12, s14
        v_mov_b32 v13, s15''')
        for j in range(4):
            a=ACC+16*j; t=16+8*j
            e(f'v_mul_f32 v{8+j}, s13, v{8+j}\ns_lshl_b32 s46, s21, 2\ns_add_u32 s46, s46, s{48+j}\ns_lshl_b32 s47, s12, 6\ns_add_u32 s46, s46, s47\ns_lshl_b32 s46, s46, s16\ns_add_u32 s46, s46, s17')
            for r in range(16): e(f'v_mul_f32 v{a+r}, v{8+j}, v{a+r}')
            st=pack_store(a,t,'s46')
            e(f'v_cndmask_b32 v{t+6}, v{t+6}, v12, s[28:29]\nv_cndmask_b32 v{t+7}, v{t+7}, v13, s[28:29]')
            for s in st: e(s)
        e(f's_endpgm\n{name}_v:')
        mainloop(True,vm2,nxt)
        e(f'''s_and_b32 s12, s11, 15
        v_cmp_eq_u32 s[28:29], 28, v12
        v_bfe_u32 v13, v0, 5, 1
        v_lshlrev_b32 v13, 4, v13
        v_mov_b32 v12, 0x3f803f80''')
        for j in range(4):
            e(f's_add_u32 s46, s20, {j}\ns_and_b32 s{48+j}, s46, 3\ns_lshl_b32 s46, s{48+j}, 7\ns_add_u32 s46, s46, {RSTD}\nv_add_u32 v14, s46, v13')
            for a in range(4): e(f'ds_read_b128 v[{112+16*j+4*a}:{115+16*j+4*a}], v14 offset:{32*a}')
        for j in range(4):
            a=ACC+16*j; t=16+8*j
            e(f's_waitcnt lgkmcnt({12-4*j})\ns_lshl_b32 s46, s21, 2\ns_add_u32 s46, s46, s{48+j}\ns_lshl_b32 s47, s12, 6\ns_add_u32 s46, s46, s47\ns_lshl_b32 s46, s46, 12\ns_add_u32 s46, s46, {KVB+2048}')
            for r in range(16): e(f'v_mul_f32 v{a+r}, v{112+16*j+r}, v{a+r}')
            st=pack_store(a,t,'s46')
            for q in range(8): e(f'v_cndmask_b32 v{t+q}, v{t+q}, v12, s[28:29]')
            for s in st: e(s)
    e(f'{name}_end:\ns_endpgm')
def launch(e,name,L):
    n=224 if name=='gu' else 192
    e.launch.append(f'; @launch kernel={name}{L}_kernel grid=({n},1,1) block=(256,1,1) lds={RSTD+512}')
```

```python
from common import *
def gen(e,name):
    wo = name=='wo'
    KS = 32 if wo else 112
    NK = KS//4
    xsrc = OF if wo else HF
    wsrc = WO if wo else WD
    res = (XF[0],XF[2]) if wo else (XF[1],XF[3])
    out = (XF[1],XF[3]) if wo else (XF[2],0)
    D = min(NK,14)
    for L in (0,1):
        e.kernel(f'{name}{L}_kernel')
        e(f's_mov_b32 s40, {res[L]}\ns_mov_b32 s39, {out[L]}\ns_mov_b32 s38, {1 if (L==1 and not wo) else 0}\ns_branch {name}_body')
        e.kd(f'{name}{L}_kernel',128+16*D,128)
    e(f'''{name}_body:
    s_load_dwordx2 s[18:19], s[0:1], 72
    s_load_dwordx2 s[16:17], s[0:1], 56
    s_cmp_ge_u32 s2, 224
    s_cbranch_scc1 {name}_end
    v_lshrrev_b32 v1, 6, v0
    v_and_b32 v2, 63, v0
    v_readfirstlane_b32 s20, v1
    v_lshlrev_b32 v2, 4, v2
    s_and_b32 s4, s2, 7
    s_lshr_b32 s5, s2, 3
    s_mul_i32 s6, s5, 37
    s_lshr_b32 s6, s6, 8
    s_mul_i32 s7, s6, 7
    s_sub_u32 s22, s5, s7
    s_lshl_b32 s8, s4, 2
    s_add_u32 s21, s8, s6
    s_and_b32 s9, s20, 1
    s_lshr_b32 s10, s20, 1
    s_lshl_b32 s11, s21, 1
    s_add_u32 s12, s11, s9
    s_xor_b32 s13, s12, 1
    s_lshl_b32 s11, s22, 1
    s_add_u32 s14, s11, s10
    s_xor_b32 s15, s14, 1
    s_mul_i32 s23, s20, {NK*1024}
    s_mul_i32 s44, s12, {KS*1024}
    s_mul_i32 s45, s13, {KS*1024}
    s_mul_i32 s46, s14, {KS*1024}
    s_mul_i32 s47, s15, {KS*1024}
    s_add_u32 s48, s23, {xsrc}
    s_add_u32 s44, s44, s48
    s_add_u32 s45, s45, s48
    s_add_u32 s48, s23, {wsrc}
    s_add_u32 s46, s46, s48
    s_add_u32 s47, s47, s48
    s_mul_i32 s49, s12, 28
    s_lshl_b32 s50, s14, 1
    s_add_u32 s49, s49, s50
    s_lshl_b32 s49, s49, 10
    s_add_u32 s50, s49, s40
    s_add_u32 s49, s49, s39
    s_waitcnt lgkmcnt(0)''')
    e.srd(24,18,WS_BYTES)
    vm=VM(e)
    e('buffer_load_dwordx4 v[8:11], v2, s[24:27], s50 offen\nbuffer_load_dwordx4 v[12:15], v2, s[24:27], s50 offen offset:1024')
    vm.issue('r'); vm.issue('r')
    def ring(ks,q): return 256+16*(ks%D)+4*q
    def issue(ks):
        if ks%4==0 and ks>0:
            for q in range(4): e(f's_add_u32 s{44+q}, s{44+q}, 4096')
        for q in (0,2,1,3):
            e(f'buffer_load_dwordx4 {R(ring(ks,q))}, v2, s[24:27], s{44+q} offen offset:{(ks%4)*1024}'); vm.issue(ks)
    for ks in range(D): issue(ks)
    ACC=16
    for ks in range(NK):
        vm.wait(ks)
        for p in range(4):
            a=ACC+16*p
            c='0' if ks==0 else R(a,16)
            e(f'v_mfma_f32_32x32x16_bf16 {R(a,16)}, {R(ring(ks,2+(p>>1)))}, {R(ring(ks,p&1))}, {c}')
        if ks>=1 and ks-1+D<NK: issue(ks-1+D)
    for p in (1,2,3):
        e(f's_xor_b32 s4, s20, {p}\ns_mul_i32 s4, s4, 3\ns_add_u32 s4, s4, {p-1}\ns_lshl_b32 s4, s4, 12\nv_add_u32 v{3+p}, s4, v2')
    e('s_mul_i32 s4, s20, 12288\nv_add_u32 v3, s4, v2\ns_nop 7')
    for p in (1,2,3):
        for q in range(4):
            a=ACC+16*p+4*q
            e(f'ds_write_b128 v{3+p}, v[{a}:{a+3}] offset:{q*1024}')
    e('s_waitcnt lgkmcnt(0)\ns_barrier')
    for p in range(3):
        for q in range(4):
            a=80+16*p+4*q
            e(f'ds_read_b128 v[{a}:{a+3}], v3 offset:{p*4096+q*1024}')
    for q in range(8):
        e(f'v_lshlrev_b32 v{32+2*q}, 16, v{8+q}\nv_and_b32 v{33+2*q}, 0xffff0000, v{8+q}')
    for r in range(16): e(f'v_add_f32 v{16+r}, v{16+r}, v{32+r}')
    for p in range(3):
        e(f's_waitcnt lgkmcnt({8-4*p})')
        for r in range(16): e(f'v_add_f32 v{16+r}, v{16+r}, v{80+16*p+r}')
    for q in range(8): e(f'v_cvt_pk_bf16_f32 v{8+q}, v{16+2*q}, v{17+2*q}')
    if not wo: e(f's_cmp_eq_u32 s38, 1\ns_cbranch_scc1 {name}_final')
    e('buffer_store_dwordx4 v[8:11], v2, s[24:27], s49 offen\nbuffer_store_dwordx4 v[12:15], v2, s[24:27], s49 offen offset:1024\ns_endpgm')
    if not wo:
        e(f'{name}_final:')
        e.srd(28,16,1835008)
        e('''v_and_b32 v3, 31, v0
        v_bfe_u32 v4, v0, 5, 1
        v_mul_u32_u24 v3, 896, v3
        v_lshl_add_u32 v3, v4, 4, v3
        s_mul_i32 s4, s12, 28672
        s_lshl_b32 s5, s14, 6
        s_add_u32 s4, s4, s5
        v_permlane32_swap_b32 v8, v10
        v_permlane32_swap_b32 v9, v11
        v_permlane32_swap_b32 v12, v14
        v_permlane32_swap_b32 v13, v15
        s_nop 1
        buffer_store_dwordx4 v[8:11], v3, s[28:31], s4 offen
        buffer_store_dwordx4 v[12:15], v3, s[28:31], s4 offen offset:32''')
    e(f'{name}_end:\ns_endpgm')
def launch(e,name,L):
    e.launch.append(f'; @launch kernel={name}{L}_kernel grid=(224,1,1) block=(256,1,1) lds=49152')
```

```python
from common import *
def gen(e):
    e.kernel('prep_kernel')
    e('''s_load_dwordx4 s[4:7], s[0:1], 0
    s_load_dwordx2 s[8:9], s[0:1], 16
    s_load_dwordx4 s[12:15], s[0:1], 32
    s_load_dwordx2 s[16:17], s[0:1], 48
    s_load_dwordx2 s[18:19], s[0:1], 72
    s_cmp_ge_u32 s2, 294
    s_cbranch_scc1 prep_end
    v_lshrrev_b32 v1, 6, v0
    v_and_b32 v2, 31, v0
    v_readfirstlane_b32 s20, v1
    v_bfe_u32 v3, v0, 5, 1
    v_and_b32 v4, 63, v0
    v_lshlrev_b32 v4, 4, v4
    s_waitcnt lgkmcnt(0)''')
    e.srd(24,18,WS_BYTES)
    e('s_cmp_ge_u32 s2, 230\ns_cbranch_scc1 prep_x')
    e('''s_mov_b32 s31, 0x20000
    s_mov_b32 s37, 1
    s_mov_b32 s38, 7
    s_mov_b32 s39, 32
    s_mov_b32 s40, 0
    s_mov_b32 s36, 1024
    s_mul_i32 s34, s20, 7
    s_cmp_ge_u32 s2, 48
    s_cbranch_scc1 prep_t1
    s_mov_b32 s28, s6
    s_and_b32 s29, s7, 0xffff
    s_mov_b32 s30, 1204224
    s_mov_b32 s32, 2688
    s_mul_i32 s33, s2, 56
    s_mov_b32 s39, 28
    s_mul_i32 s35, s2, 28
    s_add_u32 s35, s35, s34
    s_lshl_b32 s35, s35, 10''')
    e(f's_add_u32 s35, s35, {WQKV}\ns_branch prep_go\nprep_t1:')
    e('''s_cmp_ge_u32 s2, 160
    s_cbranch_scc1 prep_t2
    s_sub_u32 s41, s2, 48
    s_and_b32 s42, s41, 1
    s_lshr_b32 s41, s41, 1
    s_cmp_eq_u32 s42, 0
    s_cselect_b32 s28, s12, s14
    s_cselect_b32 s29, s13, s15
    s_and_b32 s29, s29, 0xffff
    s_mov_b32 s30, 1605632
    s_mov_b32 s32, 3584
    s_lshl_b32 s33, s41, 6
    s_mov_b32 s36, 2048
    s_mul_i32 s35, s41, 28
    s_add_u32 s35, s35, s34
    s_lshl_b32 s35, s35, 1
    s_add_u32 s35, s35, s42
    s_lshl_b32 s35, s35, 10''')
    e(f's_add_u32 s35, s35, {WGU}\ns_branch prep_go\nprep_t2:')
    e('''s_mov_b32 s37, 0
    s_mov_b32 s32, 896
    s_cmp_ge_u32 s2, 174
    s_cbranch_scc1 prep_t3
    s_sub_u32 s41, s2, 160
    s_mov_b32 s28, s8
    s_and_b32 s29, s9, 0xffff
    s_mov_b32 s30, 401408
    s_lshl_b32 s33, s41, 6
    s_mov_b32 s38, 8
    s_mov_b32 s40, 1
    s_lshl_b32 s34, s20, 3
    s_lshl_b32 s35, s41, 5
    s_add_u32 s35, s35, s34
    s_lshl_b32 s35, s35, 10''')
    e(f's_add_u32 s35, s35, {WO}\ns_branch prep_go\nprep_t3:')
    e('''s_sub_u32 s41, s2, 174
    s_and_b32 s42, s41, 3
    s_lshr_b32 s41, s41, 2
    s_mov_b32 s28, s16
    s_and_b32 s29, s17, 0xffff
    s_mov_b32 s30, 1605632
    s_lshl_b32 s33, s41, 6
    s_mul_i32 s42, s42, 28
    s_add_u32 s34, s34, s42
    s_mul_i32 s35, s41, 112
    s_add_u32 s35, s35, s34
    s_lshl_b32 s35, s35, 10''')
    e(f's_add_u32 s35, s35, {WD}\nprep_go:')
    e('''v_lshlrev_b32 v5, 2, v3
    v_mul_lo_u32 v5, v5, s32
    v_lshl_add_u32 v5, v2, 1, v5
    v_add_u32 v5, s33, v5
    v_cmp_gt_u32 vcc, s39, v2
    v_mov_b32 v6, 0x40000000
    s_nop 0
    v_cndmask_b32 v5, v6, v5, vcc
    v_cmp_ne_u32 vcc, 0, v3
    s_cmp_eq_u32 s40, 1
    s_cselect_b64 s[44:45], vcc, 0
    s_nop 1
    v_cndmask_b32 v7, v5, v6, s[44:45]''')
    for k in range(8):
        if k==7: e('s_cmp_lt_u32 s38, 8\ns_cbranch_scc1 prep_ld_done')
        e(f's_add_u32 s41, s34, {k}\ns_lshl_b32 s42, s41, 4\ns_lshr_b32 s43, s41, 1\ns_lshl_b32 s43, s43, 2\ns_mul_i32 s43, s43, s40\ns_sub_u32 s42, s42, s43\ns_mul_i32 s42, s42, s32')
        for j in range(8):
            r=8*(j//4)+j%4
            va='v7' if (j>=4 and k%2==1) else 'v5'
            e(f's_mul_i32 s43, s32, {r}\ns_add_u32 s43, s43, s42\nbuffer_load_ushort v{16+8*k+j}, {va}, s[28:31], s43 offen')
    e('prep_ld_done:\ns_waitcnt vmcnt(0)')
    for r in range(16,80): e(f'v_lshlrev_b32 v{r}, 16, v{r}')
    e('s_cmp_eq_u32 s37, 0\ns_cbranch_scc1 prep_nocenter')
    e('v_mov_b32 v8, 0\nv_mov_b32 v9, 0')
    for r in range(16,72,2): e(f'v_add_f32 v8, v8, v{r}\nv_add_f32 v9, v9, v{r+1}')
    e('''v_add_f32 v8, v8, v9
    v_lshlrev_b32 v10, 2, v0
    ds_write_b32 v10, v8
    s_waitcnt lgkmcnt(0)
    s_barrier
    v_lshlrev_b32 v10, 2, v2''')
    for i in range(8): e(f'ds_read_b32 v{80+i}, v10 offset:{i*128}')
    e('s_waitcnt lgkmcnt(0)')
    for i in range(1,8): e(f'v_add_f32 v80, v80, v{80+i}')
    e('v_mul_f32 v80, 0x3b124925, v80\nv_mov_b32 v9, 0')
    for r in range(16,72):
        e(f'v_sub_f32 v{r}, v{r}, v80\nv_add_f32 v{r}, v{r}, v9\nv_cvt_pk_bf16_f32 v8, v{r}, v{r}\nv_and_b32 v8, 0xffff0000, v8\nv_sub_f32 v9, v{r}, v8\nv_mov_b32 v{r}, v8')
    e('prep_nocenter:\ns_mov_b32 s46, 0x07060302')
    for k in range(8):
        if k==7: e('s_cmp_lt_u32 s38, 8\ns_cbranch_scc1 prep_end')
        for j in range(4):
            e(f'v_perm_b32 v{88+4*k+j}, v{16+8*k+2*j+1}, v{16+8*k+2*j}, s46')
        e(f'buffer_store_dwordx4 v[{88+4*k}:{91+4*k}], v4, s[24:27], s35 offen\ns_add_u32 s35, s35, s36')
    e('s_endpgm\nprep_x:')
    e.srd(28,4,1835008)
    e('''s_sub_u32 s41, s2, 230
    s_mul_i32 s34, s20, 7
    s_mul_i32 s42, s41, 28672
    s_lshl_b32 s43, s34, 5
    s_add_u32 s42, s42, s43
    v_mul_u32_u24 v5, 896, v2
    v_lshl_add_u32 v5, v3, 3, v5
    s_mul_i32 s35, s41, 28
    s_add_u32 s35, s35, s34
    s_lshl_b32 s35, s35, 10''')
    for k in range(7):
        e(f'buffer_load_dwordx2 v[{16+4*k}:{17+4*k}], v5, s[28:31], s42 offen offset:{32*k}\nbuffer_load_dwordx2 v[{18+4*k}:{19+4*k}], v5, s[28:31], s42 offen offset:{32*k+16}')
    for k in range(7):
        e(f's_waitcnt vmcnt({12-2*k+k})\nbuffer_store_dwordx4 v[{16+4*k}:{19+4*k}], v4, s[24:27], s35 offen\ns_add_u32 s35, s35, 1024')
    e('prep_end:\ns_endpgm')
    e.kd('prep_kernel',128,128)
    e.launch.append('; @launch kernel=prep_kernel grid=(294,1,1) block=(256,1,1) lds=1024')
```

```python
import sys
from common import *
import prep,gemma,gemmb,attn
NAME='interleave_layers__softmax_full_mha__glu_gated_glu__prompt'
def build(extra=0):
    e=E()
    prep.gen(e); gemma.gen(e,'qkv',1); attn.gen(e); gemmb.gen(e,'wo'); gemma.gen(e,'gu',2); gemmb.gen(e,'dn')
    for L in (0,1):
        gemma.launch(e,'qkv',L); attn.launch(e); gemmb.launch(e,'wo',L); gemma.launch(e,'gu',L); gemmb.launch(e,'dn',L)
    hdr=[]
    for l in open(f'cdna_kernels/{NAME}.s.ref').read().split('\n'):
        if l.startswith('; Override'): break
        hdr.append(l)
    return '\n'.join(hdr+e.launch+['.amdgcn_target "amdgcn-amd-amdhsa--gfx950"','.text']+e.l+['.section .rodata,"a"']+e.kds)+'\n'
if __name__=='__main__':
    if 'fb' in sys.argv: attn.FORCE_FALLBACK=True
    out=sys.argv[1] if len(sys.argv)>1 else f'cdna_kernels/{NAME}.s'
    open(out,'w').write(build())
```

```python
from common import *
FORCE_FALLBACK=False
Q=8; O=24; S=(56,72); P=(88,96); RING=104
FLAG=65536; MX=65536+64
def gen(e):
    e.kernel('attn_kernel'); e.pstart()
    e(f'''s_load_dwordx2 s[18:19], s[0:1], 72
    s_cmp_ge_u32 s2, 256
    s_cbranch_scc1 attn_end
    v_lshrrev_b32 v1, 6, v0
    v_and_b32 v2, 63, v0
    v_readfirstlane_b32 s20, v1
    v_lshlrev_b32 v2, 4, v2
    s_and_b32 s4, s2, 7
    s_lshr_b32 s5, s2, 3
    s_lshr_b32 s6, s5, 4
    s_lshl_b32 s4, s4, 1
    s_add_u32 s21, s4, s6
    s_and_b32 s22, s5, 15
    s_and_b32 s8, s20, 1
    s_lshr_b32 s9, s20, 1
    s_lshl_b32 s10, s22, 2
    s_lshl_b32 s11, s8, 1
    s_add_u32 s10, s10, s11
    s_lshl_b32 s11, s21, 6
    s_add_u32 s12, s11, s10
    s_lshl_b32 s12, s12, 11
    s_add_u32 s12, s12, {QB}
    s_lshl_b32 s13, s11, 12
    s_add_u32 s13, s13, {KVB}
    s_lshl_b32 s14, s9, 16
    s_add_u32 s14, s14, s13
    s_mov_b32 s28, 0
    s_mov_b32 s29, -1
    s_mov_b32 s52, 0
    v_mov_b32 v3, 0
    v_mov_b32 v4, {FLAG}
    s_waitcnt lgkmcnt(0)''')
    e.srd(24,18,WS_BYTES)
    for q in range(4): e(f'buffer_load_dwordx4 {R(Q+4*q)}, v2, s[24:27], s12 offen offset:{q*1024}')
    e(f'buffer_load_dwordx4 {R(152)}, v2, s[24:27], s13 offen\nbuffer_load_dwordx4 {R(156)}, v2, s[24:27], s13 offen offset:1024')
    vm=VM(e)
    def ring(kb,q): return RING+16*(kb%3)+4*q
    def issue(kb):
        for q in range(4):
            e(f'buffer_load_dwordx4 {R(ring(kb,q))}, v2, s[24:27], s15 offen offset:{q*1024}'); vm.issue(kb)
        e('s_add_u32 s15, s15, 4096')
    e('s_mov_b32 s15, s14')
    issue(0)
    e('ds_write_b32 v4, v3\ns_waitcnt vmcnt(4)')
    for t in range(2):
        e(f'v_mfma_f32_32x32x16_bf16 {R(S[t],16)}, {R(152)}, {R(Q+8*t)}, 0\nv_mfma_f32_32x32x16_bf16 {R(S[t],16)}, {R(156)}, {R(Q+8*t+4)}, {R(S[t],16)}')
    issue(1); issue(2)
    e('s_waitcnt lgkmcnt(0)\ns_barrier\ns_nop 4')
    for t in range(2):
        s=S[t]
        e(f'v_max3_f32 v{5+t}, v{s}, v{s+1}, v{s+2}')
        for r in range(3,15,2): e(f'v_max3_f32 v{5+t}, v{5+t}, v{s+r}, v{s+r+1}')
        e(f'v_max_f32 v{5+t}, v{5+t}, v{s+15}')
    e('v_mov_b32 v3, v5\nv_mov_b32 v7, v6\ns_nop 1\nv_permlane32_swap_b32 v5, v3\nv_permlane32_swap_b32 v6, v7\ns_nop 1')
    e('v_max_f32 v5, v5, v3\nv_max_f32 v6, v6, v7\nv_cvt_pk_bf16_f32 v5, -v5, 0\nv_cvt_pk_bf16_f32 v6, -v6, 0')
    e(f'v_cndmask_b32 v{Q+6}, v{Q+6}, v5, s[28:29]\nv_cndmask_b32 v{Q+14}, v{Q+14}, v6, s[28:29]')
    e.stamp(0); e('attn_main:')
    def qk(t,h):
        kb=t//2; tb=t%2; s=S[t%2]
        c='0' if h==0 else R(s,16)
        e(f'v_mfma_f32_32x32x16_bf16 {R(s,16)}, {R(ring(kb,h))}, {R(Q+8*tb+4*h)}, {c}')
    def pv(t,h):
        kb=t//2; tb=t%2; o=O+16*tb
        c='0' if (kb==0 and h==0) else R(o,16)
        e(f'v_mfma_f32_32x32x16_bf16 {R(o,16)}, {R(ring(kb,2+h))}, {R(P[t%2]+4*h)}, {c}')
    def ex(t,a,b):
        for r in range(a,b): e(f'v_exp_f32 v{S[t%2]+r}, v{S[t%2]+r}')
    def cv(t,a,b):
        for q in range(a,b): e(f'v_cvt_pk_bf16_f32 v{P[t%2]+q}, v{S[t%2]+2*q}, v{S[t%2]+2*q+1}')
    vm.wait(0); e('s_nop 1'); qk(0,0); qk(0,1); e('s_nop 10')
    NT=32
    for t in range(NT):
        if t+1<NT:
            if (t+1)%2==0: vm.wait((t+1)//2)
            qk(t+1,0)
        ex(t,0,4)
        if t+1<NT: qk(t+1,1)
        ex(t,4,8); cv(t,0,2)
        if t>0: pv(t-1,1)
        if t%2==0 and t>=2 and t//2+2<16: issue(t//2+2)
        ex(t,8,12); cv(t,2,4); ex(t,12,14)
        pv(t,0)
        ex(t,14,16); cv(t,4,8)
    e('s_nop 1'); pv(NT-1,1)
    e.stamp(1)
    e('s_lshl_b32 s4, s20, 13\nv_add_u32 v3, s4, v2\ns_nop 9')
    for q in range(8): e(f'ds_write_b128 v3, {R(O+4*q)} offset:{q*1024}')
    e(f'''s_lshl_b32 s4, s8, 13
    s_lshl_b32 s5, s9, 11
    s_add_u32 s5, s5, s4
    v_add_u32 v3, s5, v2
    s_lshr_b32 s6, s9, 1
    s_lshl_b32 s7, s6, 12
    s_add_u32 s7, s7, s4
    s_add_u32 s7, s7, {3072+512}
    v_and_b32 v5, 31, v0
    v_lshl_add_u32 v5, v5, 4, s7
    s_waitcnt lgkmcnt(0)
    s_barrier''')
    for k in range(4): e(f'ds_read_b32 v{152+k}, v5 offset:{k*16384}')
    for k in range(4):
        e(f'ds_read_b128 {R(56+8*k)}, v3 offset:{k*16384}\nds_read_b128 {R(60+8*k)}, v3 offset:{k*16384+1024}')
    e(f'''s_add_u32 s6, s6, s10
    s_lshl_b32 s6, s6, 5
    s_lshl_b32 s7, s21, 1
    s_add_u32 s6, s6, s7
    s_and_b32 s7, s9, 1
    s_add_u32 s6, s6, s7
    s_lshl_b32 s6, s6, 10
    s_add_u32 s6, s6, {OF}
    s_waitcnt lgkmcnt(8)
    v_add_f32 v152, v152, v153
    v_add_f32 v154, v154, v155
    v_add_f32 v152, v152, v154
    s_cmp_eq_u32 s52, 1
    s_cbranch_scc1 attn_fin
    v_cmp_nle_f32 vcc, 0x30800000, v152
    v_cmp_nge_f32 s[30:31], {'0.5' if FORCE_FALLBACK else 's53'}, v152'''.replace('v_cmp_nge_f32 s[30:31], s53','s_mov_b32 s53, 0x4e800000\nv_cmp_nge_f32 s[30:31], s53'))
    e(f'''s_or_b64 vcc, vcc, s[30:31]
    s_cbranch_vccz attn_ok
    v_mov_b32 v6, 1
    ds_write_b32 v4, v6
    attn_ok:
    s_waitcnt lgkmcnt(0)
    s_barrier
    ds_read_b32 v6, v4
    s_waitcnt lgkmcnt(0)
    v_readfirstlane_b32 s4, v6
    s_cmp_lg_u32 s4, 0
    s_cbranch_scc1 attn_fb
    attn_fin:
    v_rcp_f32 v152, v152
    s_waitcnt lgkmcnt(0)''')
    for r in range(8): e(f'v_add_f32 v{56+r}, v{56+r}, v{64+r}\nv_add_f32 v{72+r}, v{72+r}, v{80+r}')
    for r in range(8): e(f'v_add_f32 v{56+r}, v{56+r}, v{72+r}')
    for r in range(8): e(f'v_mul_f32 v{56+r}, v{56+r}, v152')
    for q in range(4): e(f'v_cvt_pk_bf16_f32 v{64+q}, v{56+2*q}, v{57+2*q}')
    e('buffer_store_dwordx4 v[64:67], v2, s[24:27], s6 offen'); e.end()
    e(f'''attn_fb:
    s_mov_b32 s52, 1
    v_mov_b32 v3, 0
    v_mov_b32 v5, 0xff800000
    v_mov_b32 v6, 0xff800000
    v_cndmask_b32 v{Q+6}, v{Q+6}, v3, s[28:29]
    v_cndmask_b32 v{Q+14}, v{Q+14}, v3, s[28:29]
    s_mov_b32 s15, s14
    s_mov_b32 s4, 16
    attn_fbl:
    buffer_load_dwordx4 {R(152)}, v2, s[24:27], s15 offen
    buffer_load_dwordx4 {R(156)}, v2, s[24:27], s15 offen offset:1024
    s_add_u32 s15, s15, 4096
    s_waitcnt vmcnt(0)''')
    for t in range(2):
        e(f'v_mfma_f32_32x32x16_bf16 {R(S[t],16)}, {R(152)}, {R(Q+8*t)}, 0\nv_mfma_f32_32x32x16_bf16 {R(S[t],16)}, {R(156)}, {R(Q+8*t+4)}, {R(S[t],16)}')
    e('s_nop 15')
    for t in range(2):
        for r in range(0,16,2): e(f'v_max3_f32 v{5+t}, v{5+t}, v{S[t]+r}, v{S[t]+r+1}')
    e(f'''s_sub_u32 s4, s4, 1
    s_cmp_lg_u32 s4, 0
    s_cbranch_scc1 attn_fbl
    v_mov_b32 v3, v5
    v_mov_b32 v7, v6
    s_nop 1
    v_permlane32_swap_b32 v5, v3
    v_permlane32_swap_b32 v6, v7
    s_nop 1
    v_max_f32 v5, v5, v3
    v_max_f32 v6, v6, v7
    v_and_b32 v3, 31, v0
    v_lshlrev_b32 v3, 2, v3
    s_lshl_b32 s4, s20, 8
    s_add_u32 s4, s4, {MX}
    v_add_u32 v7, s4, v3
    ds_write_b32 v7, v5
    ds_write_b32 v7, v6 offset:128
    s_lshl_b32 s4, s8, 8
    s_add_u32 s4, s4, {MX}
    v_add_u32 v7, s4, v3
    s_waitcnt lgkmcnt(0)
    s_barrier''')
    for t in range(2):
        for k in range(4): e(f'ds_read_b32 v{56+4*t+k}, v7 offset:{k*512+t*128}')
    e('s_waitcnt lgkmcnt(0)')
    for t in range(2):
        b=56+4*t
        e(f'''v_max3_f32 v{b}, v{b}, v{b+1}, v{b+2}
        v_max_f32 v{b}, v{b}, v{b+3}
        v_cvt_pk_bf16_f32 v{b+1}, -v{b}, 0
        v_lshlrev_b32 v{b+2}, 16, v{b+1}
        v_sub_f32 v{b}, -v{b}, v{b+2}
        v_cvt_pk_bf16_f32 v{b+2}, v{b}, 0
        v_lshlrev_b32 v{b+2}, 16, v{b+2}
        v_sub_f32 v{b}, v{b}, v{b+2}
        v_or_b32 v{b+1}, v{b+1}, v{b+2}
        v_cvt_pk_bf16_f32 v{b}, v{b}, 0
        v_cndmask_b32 v{Q+8*t+6}, v{Q+8*t+6}, v{b+1}, s[28:29]
        v_cndmask_b32 v{Q+8*t+7}, v{Q+8*t+7}, v{b}, s[28:29]''')
    e('s_mov_b32 s15, s14')
    for kb in range(3): issue(kb)
    e('s_branch attn_main\nattn_end:\ns_endpgm')
    e.kd('attn_kernel',160,160)
def launch(e): e.launch.append('; @launch kernel=attn_kernel grid=(256,1,1) block=(512,1,1) lds=67712')
```

```python
XF=[0x0,0x200000,0x400000,0x600000]
WQKV=0x800000; WO=0xA00000; WGU=0xC00000; WD=0x1000000
QB=0x1200000; KVB=0x1400000; OF=0x1800000; HF=0x1A00000
WS_BYTES=0x2400000
ST=[0x2100000+i*0x40000 for i in range(4)]
PROF=[False]
PROFB=0x2400000
class E:
    def __init__(s): s.l=[]; s.kds=[]; s.launch=[]
    def __call__(s,t):
        for x in t.split('\n'):
            x=x.strip()
            if x: s.l.append(x if x.endswith(':') or x.startswith('.') else '  '+x)
    def kernel(s,name):
        s(f'.globl {name}\n.p2align 8\n.type {name},@function\n{name}:')
    def kd(s,name,vg,acc,sg=96):
        s.kds.append(f'''.p2align 6
.amdhsa_kernel {name}
  .amdhsa_next_free_vgpr {vg}
  .amdhsa_next_free_sgpr {sg}
  .amdhsa_accum_offset {acc}
  .amdhsa_group_segment_fixed_size 0
  .amdhsa_kernarg_size 80
  .amdhsa_user_sgpr_count 2
  .amdhsa_user_sgpr_kernarg_segment_ptr 1
  .amdhsa_system_sgpr_workgroup_id_x 1
.end_amdhsa_kernel''')
    def pstart(s):
        if PROF[0]: s('s_memrealtime s[64:65]\ns_memtime s[66:67]\ns_load_dwordx2 s[62:63], s[0:1], 64\ns_mov_b32 s61, s2\n'+'\n'.join(f's_mov_b32 s{r}, 0' for r in range(68,80)))
    def stamp(s,n):
        if PROF[0]: s(f's_memtime s[{68+2*n}:{69+2*n}]\ns_waitcnt lgkmcnt(0)')
    def end(s):
        if PROF[0]:
            s('s_waitcnt vmcnt(0)\ns_memrealtime s[80:81]\ns_memtime s[82:83]\ns_bfe_u32 s62, s62, 0x60009\ns_lshl_b32 s62, s62, 17\ns_lshl_b32 s61, s61, 8\ns_add_u32 s62, s62, s61\ns_lshl_b32 s61, s20, 5\ns_add_u32 s62, s62, s61')
            s(f's_add_u32 s62, s62, {PROFB}\ns_mov_b32 s26, {PROFB+0x800000}\ns_mov_b64 exec, 1\ns_waitcnt lgkmcnt(0)')
            for i,r in enumerate((64,80,66,68,70,72,74,82)): s(f'v_mov_b32 v{4+i}, s{r}')
            s('v_mov_b32 v3, 0\nbuffer_store_dwordx4 v[4:7], v3, s[24:27], s62 offen\nbuffer_store_dwordx4 v[8:11], v3, s[24:27], s62 offen offset:16')
        s('s_endpgm')
    def srd(s,r,p,n):
        s(f's_mov_b32 s{r}, s{p}\ns_and_b32 s{r+1}, s{p+1}, 0xffff\ns_mov_b32 s{r+2}, {n}\ns_mov_b32 s{r+3}, 0x20000')
def R(base,n=4):
    if base>=256:
        b=base-256; return f'a[{b}:{b+n-1}]' if n>1 else f'a{b}'
    return f'v[{base}:{base+n-1}]' if n>1 else f'v{base}'
class VM:
    def __init__(s,e): s.e=e; s.q=[]
    def issue(s,tag): s.q.append(tag)
    def wait(s,tag):
        idx=[i for i,t in enumerate(s.q) if t==tag]
        if not idx: return
        n=len(s.q)-1-idx[-1]
        assert n<=63
        s.e(f's_waitcnt vmcnt({n})'); s.q=s.q[idx[-1]+1:]

def spread(e,mf,fill):
    n=len(mf); k=0
    for i,m in enumerate(mf):
        e(m)
        t=(len(fill)*(i+1)+n-1)//n
        while k<t:
            f=fill[k]; k+=1
            f() if callable(f) else e(f)
def stats_loads(e,vm,r,soff):
    for s_ in range(14):
        e(f'buffer_load_dword v{r+s_}, v3, s[24:27], {soff} offen offset:{s_*256}'); vm.issue('st')
def stats_calc(r):
    o=[f'v_add_f32 v{r+i}, v{r+i}, v{r+i+7}' for i in range(7)]
    o+=[f'v_add_f32 v{r}, v{r}, v{r+1}',f'v_add_f32 v{r+2}, v{r+2}, v{r+3}',f'v_add_f32 v{r+4}, v{r+4}, v{r+5}',f'v_add_f32 v{r}, v{r}, v{r+6}',f'v_add_f32 v{r+2}, v{r+2}, v{r+4}',f'v_add_f32 v{r}, v{r}, v{r+2}',
        f'v_mul_f32 v{r}, 0x3b124925, v{r}',f'v_mov_b32 v{r+1}, v{r}','s_nop 1',f'v_permlane32_swap_b32 v{r}, v{r+1}','s_nop 1',
        f'v_fma_f32 v{r}, -v{r}, v{r}, v{r+1}',f'v_max_f32 v{r}, 0, v{r}',f'v_add_f32 v{r}, 0x3727c5ac, v{r}',f'v_rsq_f32 v{r}, v{r}','s_nop 0']
    return o
```

```python
from common import *
def gen(e,name):
    wo = name=='wo'
    KS = 32 if wo else 112
    NK = KS//4
    xsrc = OF if wo else HF
    wsrc = WO if wo else WD
    res = (XF[0],XF[2]) if wo else (XF[1],XF[3])
    out = (XF[1],XF[3]) if wo else (XF[2],0)
    D = 6; PRE=4
    for L in (0,1):
        e.kernel(f'{name}{L}_kernel')
        e(f's_mov_b32 s40, {res[L]}\ns_mov_b32 s39, {out[L]}\ns_mov_b32 s38, {1 if (L==1 and not wo) else 0}\ns_mov_b32 s37, {ST[2*L+1] if wo else ST[2]}\ns_branch {name}_body')
        e.kd(f'{name}{L}_kernel',128+16*D,128)
    e(f'{name}_body:'); e.pstart()
    e(f'''    s_load_dwordx2 s[18:19], s[0:1], 72
    s_load_dwordx2 s[16:17], s[0:1], 56
    s_cmp_ge_u32 s2, 224
    s_cbranch_scc1 {name}_end
    v_lshrrev_b32 v1, 6, v0
    v_and_b32 v2, 63, v0
    v_readfirstlane_b32 s20, v1
    v_lshlrev_b32 v2, 4, v2
    s_and_b32 s4, s2, 7
    s_lshr_b32 s5, s2, 3
    s_mul_i32 s6, s5, 37
    s_lshr_b32 s6, s6, 8
    s_mul_i32 s7, s6, 7
    s_sub_u32 s22, s5, s7
    s_lshl_b32 s8, s4, 2
    s_add_u32 s21, s8, s6
    s_and_b32 s9, s20, 1
    s_lshr_b32 s10, s20, 1
    s_lshl_b32 s11, s21, 1
    s_add_u32 s12, s11, s9
    s_xor_b32 s13, s12, 1
    s_lshl_b32 s11, s22, 1
    s_add_u32 s14, s11, s10
    s_xor_b32 s15, s14, 1
    s_mul_i32 s23, s20, {NK*1024}
    s_mul_i32 s44, s12, {KS*1024}
    s_mul_i32 s45, s13, {KS*1024}
    s_mul_i32 s46, s14, {KS*1024}
    s_mul_i32 s47, s15, {KS*1024}
    s_add_u32 s48, s23, {xsrc}
    s_add_u32 s44, s44, s48
    s_add_u32 s45, s45, s48
    s_add_u32 s48, s23, {wsrc}
    s_add_u32 s46, s46, s48
    s_add_u32 s47, s47, s48
    s_mul_i32 s49, s12, 28
    s_lshl_b32 s50, s14, 1
    s_add_u32 s49, s49, s50
    s_lshl_b32 s49, s49, 10
    s_add_u32 s50, s49, s40
    s_add_u32 s49, s49, s39
    s_waitcnt lgkmcnt(0)''')
    e.srd(24,18,WS_BYTES)
    vm=VM(e)
    def ring(ks,q): return 256+16*(ks%D)+4*q
    def issue(ks):
        def ld(q):
            def f():
                if ks%4==0 and ks>0: e(f's_add_u32 s{44+q}, s{44+q}, 4096')
                e(f'buffer_load_dwordx4 {R(ring(ks,q))}, v2, s[24:27], s{44+q} offen offset:{(ks%4)*1024}'); vm.issue(ks)
            return f
        return [ld(q) for q in (0,2,1,3)]
    for ks in range(PRE):
        for f in issue(ks): f()
    ACC=16
    e.stamp(0)
    for ks in range(NK):
        vm.wait(ks)
        if ks==0: e.stamp(1)
        mf=[]
        for p in range(4):
            a=ACC+16*p
            c='0' if ks==0 else R(a,16)
            mf.append(f'v_mfma_f32_32x32x16_bf16 {R(a,16)}, {R(ring(ks,2+(p>>1)))}, {R(ring(ks,p&1))}, {c}')
        fl=issue(ks+PRE) if ks+PRE<NK else []
        if ks+PRE==NK:
            def res():
                e('buffer_load_dwordx4 v[8:11], v2, s[24:27], s50 offen\nbuffer_load_dwordx4 v[12:15], v2, s[24:27], s50 offen offset:1024')
                vm.issue('r'); vm.issue('r')
            fl=[res]
        spread(e,mf,fl)
    e.stamp(2)
    for p in (1,2,3):
        e(f's_xor_b32 s4, s20, {p}\ns_mul_i32 s4, s4, 3\ns_add_u32 s4, s4, {p-1}\ns_lshl_b32 s4, s4, 12\nv_add_u32 v{3+p}, s4, v2')
    e('s_mul_i32 s4, s20, 12288\nv_add_u32 v3, s4, v2\ns_nop 7')
    for p in (1,2,3):
        for q in range(4):
            a=ACC+16*p+4*q
            e(f'ds_write_b128 v{3+p}, v[{a}:{a+3}] offset:{q*1024}')
    e('s_waitcnt lgkmcnt(0)\ns_barrier')
    for p in range(3):
        for q in range(4):
            a=80+16*p+4*q
            e(f'ds_read_b128 v[{a}:{a+3}], v3 offset:{p*4096+q*1024}')
    vm.wait('r')
    for q in range(8):
        e(f'v_lshlrev_b32 v{32+2*q}, 16, v{8+q}\nv_and_b32 v{33+2*q}, 0xffff0000, v{8+q}')
    for r in range(16): e(f'v_add_f32 v{16+r}, v{16+r}, v{32+r}')
    for p in range(3):
        e(f's_waitcnt lgkmcnt({8-4*p})')
        for r in range(16): e(f'v_add_f32 v{16+r}, v{16+r}, v{80+16*p+r}')
    for q in range(8): e(f'v_cvt_pk_bf16_f32 v{8+q}, v{16+2*q}, v{17+2*q}')
    if not wo: e(f's_cmp_eq_u32 s38, 1\ns_cbranch_scc1 {name}_final')
    e('buffer_store_dwordx4 v[8:11], v2, s[24:27], s49 offen\nbuffer_store_dwordx4 v[12:15], v2, s[24:27], s49 offen offset:1024')
    e('v_add_f32 v32, v16, v17\nv_add_f32 v33, v18, v19\nv_mul_f32 v34, v16, v16\nv_mul_f32 v35, v17, v17')
    for r in range(18,32,2):
        if r>=20: e(f'v_add_f32 v32, v32, v{r}\nv_add_f32 v33, v33, v{r+1}')
        e(f'v_fmac_f32 v34, v{r}, v{r}\nv_fmac_f32 v35, v{r+1}, v{r+1}')
    e('''v_add_f32 v32, v32, v33
    v_add_f32 v34, v34, v35
    s_lshl_b32 s4, s12, 12
    s_lshl_b32 s5, s14, 8
    v_permlane32_swap_b32 v32, v34
    s_add_u32 s4, s4, s5
    s_add_u32 s4, s4, s37
    v_lshrrev_b32 v3, 2, v2
    v_add_f32 v32, v32, v34
    buffer_store_dword v32, v3, s[24:27], s4 offen''')
    e.end()
    if not wo:
        e(f'{name}_final:')
        e.srd(28,16,1835008)
        e('''v_and_b32 v3, 31, v0
        v_bfe_u32 v4, v0, 5, 1
        v_mul_u32_u24 v3, 896, v3
        v_lshl_add_u32 v3, v4, 4, v3
        s_mul_i32 s4, s12, 28672
        s_lshl_b32 s5, s14, 6
        s_add_u32 s4, s4, s5
        v_permlane32_swap_b32 v8, v10
        v_permlane32_swap_b32 v9, v11
        v_permlane32_swap_b32 v12, v14
        v_permlane32_swap_b32 v13, v15
        s_nop 1
        buffer_store_dwordx4 v[8:11], v3, s[28:31], s4 offen
        buffer_store_dwordx4 v[12:15], v3, s[28:31], s4 offen offset:32''')
    if not wo: e.end()
    e(f'{name}_end:\ns_endpgm')
def launch(e,name,L):
    e.launch.append(f'; @launch kernel={name}{L}_kernel grid=(224,1,1) block=(256,1,1) lds=49152')
```

```python
from common import *
X3=86016; RS=114688
def gen(e):
    for L in (0,1):
        e.kernel(f'gu{L}_kernel')
        e(f's_mov_b32 s40, {XF[2*L+1]}\ns_mov_b32 s39, {ST[2*L+1]}\ns_branch gu_body')
        e.kd(f'gu{L}_kernel',480,256)
    e('gu_body:'); e.pstart()
    e(f'''s_load_dwordx2 s[18:19], s[0:1], 72
    s_cmp_ge_u32 s2, 224
    s_cbranch_scc1 gu_end
    v_lshrrev_b32 v1, 6, v0
    v_and_b32 v2, 63, v0
    v_readfirstlane_b32 s20, v1
    v_lshlrev_b32 v3, 2, v2
    v_lshlrev_b32 v2, 4, v2
    s_and_b32 s4, s2, 7
    s_lshr_b32 s5, s2, 3
    s_mul_i32 s6, s5, 37
    s_lshr_b32 s6, s6, 8
    s_mul_i32 s7, s6, 7
    s_sub_u32 s7, s5, s7
    s_lshr_b32 s8, s4, 1
    s_lshl_b32 s8, s8, 2
    s_add_u32 s21, s8, s6
    s_and_b32 s9, s4, 1
    s_mul_i32 s9, s9, 7
    s_add_u32 s22, s9, s7
    s_mul_i32 s41, s21, 114688
    s_add_u32 s41, s41, s40
    s_mul_i32 s50, s20, 7168
    s_add_u32 s51, s50, {X3}
    s_add_u32 s50, s50, s41
    s_add_u32 s50, s50, 86016
    s_lshl_b32 s42, s20, 10
    s_add_u32 s41, s41, s42
    s_mul_i32 s42, s20, 3072
    s_lshl_b32 s11, s22, 2
    s_add_u32 s11, s11, s20
    s_mul_i32 s43, s11, 57344
    s_add_u32 s43, s43, {WGU}
    s_lshl_b32 s44, s21, 2
    s_add_u32 s44, s44, s20
    s_lshl_b32 s44, s44, 12
    s_add_u32 s44, s44, s39
    s_waitcnt lgkmcnt(0)''')
    e.srd(24,18,WS_BYTES)
    XB=16; ACC=64; SR=40; PK=192
    vm=VM(e)
    def wreg(ks,u): return 256+8*ks+4*u
    def loads(st):
        def d(q):
            def f():
                e(f's_add_u32 m0, s42, {st*12288+q*1024}\ns_add_u32 s45, s41, {st*4096+q*28672}')
                e(f'buffer_load_dwordx4 v2, s[24:27], s45 offen lds'); vm.issue(('d',st))
            return f
        def w(q):
            def f():
                if q%4==0: e(f's_add_u32 s46, s43, {st*8192+q*1024}')
                e(f'buffer_load_dwordx4 {R(wreg(4*st+q//2,q%2))}, v2, s[24:27], s46 offen offset:{(q%4)*1024}'); vm.issue(('w',4*st+q//2))
            return f
        return [d(0),d(1),d(2)]+[w(q) for q in range(8)]
    def loads3():
        def d(q):
            def f():
                if q%4==0: e(f's_add_u32 m0, s51, {q*1024}\ns_add_u32 s45, s50, {q*1024}')
                e(f'buffer_load_dwordx4 v2, s[24:27], s45 offen offset:{(q%4)*1024} lds'); vm.issue('x3')
            return f
        return [d(q) for q in range(7)]
    for st in (0,1):
        for f in loads(st): f()
    stats_loads(e,vm,SR,'s44')
    e(f'''s_lshl_b32 s46, s20, 7
    v_and_b32 v12, 31, v0
    v_lshlrev_b32 v13, 2, v12
    v_add_u32 v13, {RS}, v13
    v_add_u32 v14, s46, v13
    v_add_u32 v4, 0xc000, v2
    v_add_u32 v5, {X3}, v2
    s_lshl_b32 s46, s21, 2
    s_mul_i32 s46, s46, 112
    s_lshl_b32 s47, s11, 1
    s_add_u32 s46, s46, s47
    s_lshl_b32 s46, s46, 10
    s_add_u32 s52, s46, {HF}
    s_add_u32 s53, s52, {112*1024}
    s_add_u32 s54, s53, {112*1024}
    s_add_u32 s55, s54, {112*1024}''')
    def rd(ks):
        b=XB+12*(ks%2); a,o=('v2',ks*3072) if ks<16 else ('v4',ks*3072-0xc000)
        for j in range(3): e(f'ds_read_b128 v[{b+4*j}:{b+4*j+3}], {a} offset:{o+j*1024}')
    def rd3(ks): e(f'ds_read_b128 {R(224+4*(ks%4))}, v5 offset:{ks*1024}')
    e.stamp(0); vm.wait(('d',0)); e('s_barrier'); e.stamp(1); rd(0)
    for st in range(7):
        fill=loads(st+2) if st+2<7 else (loads3() if st==5 else [])
        for k in range(4):
            ks=4*st+k
            if ks==13:
                vm.wait('st')
                for o in stats_calc(SR): e(o)
                e(f'ds_write_b32 v14, v{SR}')
            if ks==17:
                for j in range(4): e(f'ds_read_b32 v{8+j}, v13 offset:{128*j}')
            if ks+1<28:
                if k==3: vm.wait(('d',st+1)); e('s_barrier')
                rd(ks+1)
            vm.wait(('w',ks))
            e(f's_waitcnt lgkmcnt({3 if ks+1<28 else 0})')
            if ks==27:
                vm.wait('x3'); e('s_barrier')
                for q in range(3): rd3(q)
            b=XB+12*(ks%2); mf=[]
            for j in range(3):
                for u in range(2):
                    a=ACC+32*j+16*u; c='0' if ks==0 else R(a,16)
                    mf.append(f'v_mfma_f32_32x32x16_bf16 {R(a,16)}, {R(wreg(ks,u))}, {R(b+4*j)}, {c}')
            fl=fill[3*k:3*k+3]
            if ks==18: fl=fl+[f'v_rcp_f32 v{44+j}, v{8+j}\nv_mul_f32 v{8+j}, 0xbfb8aa3b, v{8+j}' for j in range(4)]
            spread(e,mf,fl)
    e.stamp(2)
    def epi(j):
        G=ACC+32*j; U=G+16; t=PK+8*j; o=[]
        for h in (0,8):
            rr=range(h,h+8)
            o+=[f'v_mul_f32 v{G+r}, v{8+j}, v{G+r}' for r in rr]
            o+=[f'v_exp_f32 v{G+r}, v{G+r}' for r in rr]
            o+=[f'v_fma_f32 v{G+r}, v{G+r}, v{44+j}, v{44+j}' for r in rr]
            o+=[f'v_rcp_f32 v{G+r}, v{G+r}' for r in rr]
            o+=[f'v_mul_f32 v{U+r}, v{U+r}, v{G+r}' for r in rr]
            o+=[f'v_cvt_pk_bf16_f32 v{t+r//2}, v{U+r}, v{U+r+1}' for r in range(h,h+8,2)]
            o+=[f'buffer_store_dwordx4 v[{t+h//2}:{t+h//2+3}], v2, s[24:27], s{52+j} offen offset:{h*128}']
        return o
    ops=epi(0)+epi(1)+epi(2); n=len(ops)
    for ks in range(28):
        if ks+3<28: rd3(ks+3)
        e(f's_waitcnt lgkmcnt({min(3,27-ks)})')
        mf=[f'v_mfma_f32_32x32x16_bf16 {R(ACC+96+16*u,16)}, {R(wreg(ks,u))}, {R(224+4*(ks%4))}, {"0" if ks==0 else R(ACC+96+16*u,16)}' for u in range(2)]
        fl=ops[n*ks//28:n*(ks+1)//28]
        if ks==0: e(mf[0]); e(mf[1]); e('s_nop 7'); [e(x) for x in fl]
        else: spread(e,mf,fl)
    e.stamp(3)
    e('s_nop 7')
    for o in epi(3): e(o)
    e.end()
    e('gu_end:\ns_endpgm')
def launch(e,L): e.launch.append(f'; @launch kernel=gu{L}_kernel grid=(224,1,1) block=(256,1,1) lds={RS+512}')
```

```python
from common import *
def gen(e):
    e.kernel('prep_kernel'); e.pstart()
    e('''s_load_dwordx4 s[4:7], s[0:1], 0
    s_load_dwordx2 s[8:9], s[0:1], 16
    s_load_dwordx4 s[12:15], s[0:1], 32
    s_load_dwordx2 s[16:17], s[0:1], 48
    s_load_dwordx2 s[18:19], s[0:1], 72
    s_cmp_ge_u32 s2, 294
    s_cbranch_scc1 prep_end
    v_lshrrev_b32 v1, 6, v0
    v_and_b32 v2, 31, v0
    v_readfirstlane_b32 s20, v1
    v_bfe_u32 v3, v0, 5, 1
    v_and_b32 v4, 63, v0
    v_lshlrev_b32 v4, 4, v4
    s_waitcnt lgkmcnt(0)''')
    e.srd(24,18,WS_BYTES)
    e('s_cmp_ge_u32 s2, 230\ns_cbranch_scc1 prep_x')
    e(f'''s_mov_b32 s31, 0x20000
    s_mov_b32 s37, 1
    s_mov_b32 s38, 7
    s_mov_b32 s39, 32
    s_mov_b32 s40, 0
    s_mov_b32 s36, 1024
    s_mul_i32 s34, s20, 7
    s_cmp_ge_u32 s2, 48
    s_cbranch_scc1 prep_t1
    s_mov_b32 s28, s6
    s_and_b32 s29, s7, 0xffff
    s_mov_b32 s30, 1204224
    s_mov_b32 s32, 2688
    s_mul_i32 s33, s2, 56
    s_mov_b32 s39, 28
    s_mov_b32 s36, 3072
    s_and_b32 s41, s2, 15
    s_lshr_b32 s42, s2, 4
    s_mul_i32 s35, s41, 28
    s_add_u32 s35, s35, s34
    s_mul_i32 s35, s35, 3
    s_add_u32 s35, s35, s42
    s_lshl_b32 s35, s35, 10
    s_add_u32 s35, s35, {WQKV}
    s_branch prep_go
    prep_t1:
    s_cmp_ge_u32 s2, 160
    s_cbranch_scc1 prep_t2
    s_sub_u32 s41, s2, 48
    s_and_b32 s42, s41, 1
    s_lshr_b32 s41, s41, 1
    s_cmp_eq_u32 s42, 0
    s_cselect_b32 s28, s12, s14
    s_cselect_b32 s29, s13, s15
    s_and_b32 s29, s29, 0xffff
    s_mov_b32 s30, 1605632
    s_mov_b32 s32, 3584
    s_lshl_b32 s33, s41, 6
    s_mov_b32 s36, 2048
    s_mul_i32 s35, s41, 28
    s_add_u32 s35, s35, s34
    s_lshl_b32 s35, s35, 1
    s_add_u32 s35, s35, s42
    s_lshl_b32 s35, s35, 10
    s_add_u32 s35, s35, {WGU}
    s_branch prep_go
    prep_t2:
    s_mov_b32 s37, 0
    s_mov_b32 s32, 896
    s_cmp_ge_u32 s2, 174
    s_cbranch_scc1 prep_t3
    s_sub_u32 s41, s2, 160
    s_mov_b32 s28, s8
    s_and_b32 s29, s9, 0xffff
    s_mov_b32 s30, 401408
    s_lshl_b32 s33, s41, 6
    s_mov_b32 s38, 8
    s_mov_b32 s40, 1
    s_lshl_b32 s34, s20, 3
    s_lshl_b32 s35, s41, 5
    s_add_u32 s35, s35, s34
    s_lshl_b32 s35, s35, 10
    s_add_u32 s35, s35, {WO}
    s_branch prep_go
    prep_t3:
    s_sub_u32 s41, s2, 174
    s_and_b32 s42, s41, 3
    s_lshr_b32 s41, s41, 2
    s_mov_b32 s28, s16
    s_and_b32 s29, s17, 0xffff
    s_mov_b32 s30, 1605632
    s_lshl_b32 s33, s41, 6
    s_mul_i32 s42, s42, 28
    s_add_u32 s34, s34, s42
    s_mul_i32 s35, s41, 112
    s_add_u32 s35, s35, s34
    s_lshl_b32 s35, s35, 10
    s_add_u32 s35, s35, {WD}
    prep_go:''')
    e('''v_bfe_u32 v5, v0, 2, 4
    v_mul_lo_u32 v5, v5, s32
    v_and_b32 v6, 3, v0
    v_lshl_add_u32 v5, v6, 4, v5
    v_add_u32 v5, s33, v5
    s_lshl_b32 s47, s20, 13
    v_add_u32 v7, s47, v4''')
    for k in range(8):
        if k==7: e('s_cmp_lt_u32 s38, 8\ns_cbranch_scc1 prep_ld_done')
        e(f's_add_u32 s41, s34, {k}\ns_lshl_b32 s42, s41, 4\ns_lshr_b32 s43, s41, 1\ns_lshl_b32 s43, s43, 2\ns_mul_i32 s43, s43, s40\ns_sub_u32 s42, s42, s43\ns_mul_i32 s42, s42, s32')
        e(f'buffer_load_dwordx4 {R(80+4*k)}, v5, s[28:31], s42 offen')
    e('prep_ld_done:'); e.stamp(0)
    e('''v_bfe_u32 v8, v0, 2, 2
    v_lshl_add_u32 v8, v3, 2, v8
    v_lshlrev_b32 v8, 6, v8
    v_bfe_u32 v9, v0, 4, 1
    v_lshl_add_u32 v8, v9, 5, v8
    v_lshl_add_u32 v8, v6, 3, v8
    v_add_u32 v8, s47, v8
    v_cmp_gt_u32 s[48:49], s39, v2
    v_cmp_ne_u32 vcc, 0, v3
    s_cmp_eq_u32 s40, 1
    s_cselect_b64 s[44:45], vcc, 0
    v_mov_b32 v9, 0
    s_waitcnt vmcnt(0)''')
    e.stamp(1)
    for k in range(8): e(f'ds_write_b128 v7, {R(80+4*k)} offset:{k*1024}')
    for k in range(8):
        e(f'ds_read_b64_tr_b16 v[{112+4*k}:{113+4*k}], v8 offset:{k*1024}\nds_read_b64_tr_b16 v[{114+4*k}:{115+4*k}], v8 offset:{k*1024+512}')
    e('s_waitcnt lgkmcnt(0)')
    for k in range(1,8,2): e(f'v_cndmask_b32 v{114+4*k}, v{114+4*k}, v9, s[44:45]\nv_cndmask_b32 v{115+4*k}, v{115+4*k}, v9, s[44:45]')
    e('s_cmp_eq_u32 s37, 0\ns_cbranch_scc1 prep_nocenter')
    for r in range(28): e(f'v_cndmask_b32 v{112+r}, v9, v{112+r}, s[48:49]')
    for r in range(28): e(f'v_lshlrev_b32 v{16+2*r}, 16, v{112+r}\nv_and_b32 v{17+2*r}, 0xffff0000, v{112+r}')
    for c in range(4): e(f'v_add_f32 v{10+c}, v{16+c}, v{20+c}')
    for r in range(24,72): e(f'v_add_f32 v{10+r%4}, v{10+r%4}, v{r}')
    e('''v_add_f32 v10, v10, v11
    v_add_f32 v12, v12, v13
    v_add_f32 v10, v10, v12
    v_lshlrev_b32 v11, 2, v0
    ds_write_b32 v11, v10 offset:32768
    s_waitcnt lgkmcnt(0)
    s_barrier
    v_lshlrev_b32 v11, 2, v2''')
    for i in range(8): e(f'ds_read_b32 v{80+i}, v11 offset:{32768+i*128}')
    e('s_waitcnt lgkmcnt(0)')
    for i in range(1,8): e(f'v_add_f32 v80, v80, v{80+i}')
    e('v_mul_f32 v80, 0x3b124925, v80')
    for r in range(16,72): e(f'v_sub_f32 v{r}, v{r}, v80')
    for p in range(4):
        for k in range(7):
            a=16+8*k+2*p
            if p>0: e(f'v_add_f32 v{a}, v{a}, v{88+k}')
        for k in range(7): e(f'v_cvt_pk_bf16_f32 v{112+4*k+p}, v{16+8*k+2*p}, v{16+8*k+2*p}')
        for k in range(7): e(f'v_and_b32 v{96+k}, 0xffff0000, v{112+4*k+p}')
        for k in range(7): e(f'v_sub_f32 v{96+k}, v{16+8*k+2*p}, v{96+k}')
        for k in range(7): e(f'v_add_f32 v{17+8*k+2*p}, v{17+8*k+2*p}, v{96+k}')
        for k in range(7): e(f'v_cvt_pk_bf16_f32 v{112+4*k+p}, v{16+8*k+2*p}, v{17+8*k+2*p}')
        if p<3:
            for k in range(7): e(f'v_and_b32 v{88+k}, 0xffff0000, v{112+4*k+p}')
            for k in range(7): e(f'v_sub_f32 v{88+k}, v{17+8*k+2*p}, v{88+k}')
    e('prep_nocenter:')
    for k in range(8):
        if k==7: e('s_cmp_lt_u32 s38, 8\ns_cbranch_scc1 prep_fin')
        e(f'buffer_store_dwordx4 {R(112+4*k)}, v4, s[24:27], s35 offen\ns_add_u32 s35, s35, s36')
    e('prep_fin:'); e.end(); e('prep_x:')
    e.srd(28,4,1835008)
    e(f'''s_sub_u32 s41, s2, 230
    s_mul_i32 s34, s20, 7
    s_mul_i32 s42, s41, 28672
    s_lshl_b32 s43, s34, 5
    s_add_u32 s42, s42, s43
    v_mul_u32_u24 v5, 896, v2
    v_lshl_add_u32 v5, v3, 3, v5
    s_mul_i32 s35, s41, 28
    s_add_u32 s35, s35, s34
    s_lshl_b32 s35, s35, 10
    s_lshl_b32 s36, s41, 12
    s_lshl_b32 s37, s20, 8
    s_add_u32 s36, s36, s37
    s_add_u32 s36, s36, {ST[0]}
    s_mov_b32 s44, 0x3f803f80
    v_mov_b32 v8, 0
    v_mov_b32 v9, 0
    v_mov_b32 v10, 0
    v_lshrrev_b32 v6, 2, v4''')
    for k in range(7):
        e(f'buffer_load_dwordx2 v[{16+4*k}:{17+4*k}], v5, s[28:31], s42 offen offset:{32*k}\nbuffer_load_dwordx2 v[{18+4*k}:{19+4*k}], v5, s[28:31], s42 offen offset:{32*k+16}')
    for q in (1,2,3): e(f'buffer_store_dword v10, v6, s[24:27], s36 offen offset:{1024*q}')
    for k in range(7):
        e(f's_waitcnt vmcnt({15-2*k+k})\nbuffer_store_dwordx4 v[{16+4*k}:{19+4*k}], v4, s[24:27], s35 offen\ns_add_u32 s35, s35, 1024')
        for q in range(4): e(f'v_dot2_f32_bf16 v8, v{16+4*k+q}, s44, v8\nv_dot2_f32_bf16 v9, v{16+4*k+q}, v{16+4*k+q}, v9')
    e('s_nop 4\nv_permlane32_swap_b32 v8, v9\ns_nop 1\nv_add_f32 v8, v8, v9\nbuffer_store_dword v8, v6, s[24:27], s36 offen')
    e.end(); e('prep_end:\ns_endpgm')
    e.kd('prep_kernel',144,144)
    e.launch.append('; @launch kernel=prep_kernel grid=(294,1,1) block=(256,1,1) lds=33792')
```

```python
from common import *
RS=86016
def gen(e):
    for L in (0,1):
        e.kernel(f'qkv{L}_kernel')
        e(f's_mov_b32 s40, {XF[2*L]}\ns_mov_b32 s39, {ST[2*L]}\ns_branch qkv_body')
        e.kd(f'qkv{L}_kernel',256,256)
    e('qkv_body:'); e.pstart()
    e(f'''s_load_dwordx2 s[18:19], s[0:1], 72
    s_cmp_ge_u32 s2, 256
    s_cbranch_scc1 qkv_end
    v_lshrrev_b32 v1, 6, v0
    v_and_b32 v2, 63, v0
    v_readfirstlane_b32 s20, v1
    v_lshlrev_b32 v3, 2, v2
    v_lshlrev_b32 v2, 4, v2
    s_and_b32 s4, s2, 7
    s_lshr_b32 s5, s2, 3
    s_lshr_b32 s6, s4, 1
    s_lshl_b32 s6, s6, 2
    s_lshr_b32 s7, s5, 3
    s_add_u32 s21, s6, s7
    s_and_b32 s6, s4, 1
    s_lshl_b32 s6, s6, 3
    s_and_b32 s7, s5, 7
    s_add_u32 s22, s6, s7
    s_lshl_b32 s10, s21, 2
    s_add_u32 s10, s10, s20
    s_mul_i32 s41, s10, 28672
    s_add_u32 s41, s41, s40
    s_mul_i32 s42, s20, 3072
    s_mul_i32 s43, s22, 86016
    s_add_u32 s43, s43, s42
    s_add_u32 s43, s43, {WQKV}
    s_lshl_b32 s44, s10, 12
    s_add_u32 s44, s44, s39
    s_waitcnt lgkmcnt(0)''')
    e.srd(24,18,WS_BYTES)
    X=64; WB=16; ACC=176; SR=40
    vm=VM(e)
    def loads(st):
        o=[]
        def d(q):
            def f():
                if q==0: e(f's_add_u32 m0, s42, {st*12288}\ns_add_u32 s45, s43, {st*12288}')
                e(f'buffer_load_dwordx4 v2, s[24:27], s45 offen offset:{q*1024} lds'); vm.issue(('d',st))
            return f
        def x(q):
            def f():
                if q==0: e(f's_add_u32 s46, s41, {st*4096}')
                e(f'buffer_load_dwordx4 {R(X+16*st+4*q)}, v2, s[24:27], s46 offen offset:{q*1024}'); vm.issue(('x',4*st+q))
            return f
        return [d(0),d(1),d(2),x(0),x(1),x(2),x(3)]
    for st in (0,1):
        for f in loads(st): f()
    stats_loads(e,vm,SR,'s44')
    e(f'''s_lshl_b32 s46, s20, 7
    s_add_u32 s46, s46, {RS}
    v_and_b32 v12, 31, v0
    v_lshl_add_u32 v14, v12, 2, s46
    v_bfe_u32 v13, v0, 5, 1
    v_lshl_add_u32 v15, v13, 4, s46
    v_add_u32 v4, 0xc000, v2''')
    def rd(ks):
        b=WB+12*(ks%2); a,o=('v2',ks*3072) if ks<16 else ('v4',ks*3072-0xc000)
        for j in range(3): e(f'ds_read_b128 v[{b+4*j}:{b+4*j+3}], {a} offset:{o+j*1024}')
    e.stamp(0); vm.wait(('d',0)); e('s_barrier'); e.stamp(1); rd(0)
    for st in range(7):
        fill=loads(st+2) if st+2<7 else []
        for k in range(4):
            ks=4*st+k
            if ks==13:
                vm.wait('st')
                for o in stats_calc(SR): e(o)
                e(f'ds_write_b32 v14, v{SR}')
                for a in range(4): e(f'ds_read_b128 v[{224+4*a}:{227+4*a}], v15 offset:{32*a}')
            if ks+1<28:
                if k==3: vm.wait(('d',st+1)); e('s_barrier')
                rd(ks+1)
            vm.wait(('x',ks))
            e(f's_waitcnt lgkmcnt({3 if ks+1<28 else 0})')
            b=WB+12*(ks%2); mf=[]
            for j in range(3):
                a=ACC+16*j; c='0' if ks==0 else R(a,16)
                A,B=(R(X+4*ks),R(b+4*j)) if j==2 else (R(b+4*j),R(X+4*ks))
                mf.append(f'v_mfma_f32_32x32x16_bf16 {R(a,16)}, {A}, {B}, {c}')
            spread(e,mf,fill[2*k:2*k+2])
    e.stamp(2)
    e(f'''s_lshl_b32 s47, s22, 6
    s_add_u32 s47, s47, s10
    s_lshl_b32 s48, s47, 11
    s_add_u32 s48, s48, {QB}
    s_lshl_b32 s49, s47, 12
    s_add_u32 s49, s49, {KVB}
    s_mov_b32 s28, 0
    s_mov_b32 s29, -1
    v_cmp_eq_u32 s[30:31], 28, v12
    v_mul_f32 v{SR+1}, 0x3e8b97f6, v{SR}
    v_mov_b32 v5, 0x3f803f80
    v_mov_b32 v6, 0x3f80
    v_mov_b32 v7, 0
    s_nop 4''')
    for j in range(3):
        a=ACC+16*j; t=64+8*j
        for r in range(16): e(f'v_mul_f32 v{a+r}, v{[SR+1,SR,224+r][j]}, v{a+r}')
        for q in range(8): e(f'v_cvt_pk_bf16_f32 v{t+q}, v{a+2*q}, v{a+2*q+1}')
        if j==0: e(f'v_cndmask_b32 v{t+6}, v{t+6}, v7, s[28:29]\nv_cndmask_b32 v{t+7}, v{t+7}, v7, s[28:29]')
        if j==1: e(f'v_cndmask_b32 v{t+6}, v{t+6}, v5, s[28:29]\nv_cndmask_b32 v{t+7}, v{t+7}, v6, s[28:29]')
        if j==2:
            for q in range(8): e(f'v_cndmask_b32 v{t+q}, v{t+q}, v5, s[30:31]')
        so,o=[('s48',0),('s49',0),('s49',2048)][j]
        e(f'buffer_store_dwordx4 v[{t}:{t+3}], v2, s[24:27], {so} offen offset:{o}\nbuffer_store_dwordx4 v[{t+4}:{t+7}], v2, s[24:27], {so} offen offset:{o+1024}')
    e.end()
    e('qkv_end:\ns_endpgm')
def launch(e,L): e.launch.append(f'; @launch kernel=qkv{L}_kernel grid=(256,1,1) block=(256,1,1) lds={RS+512}')
```

```python
import sys
from common import *
import prep,qkv,gu,gemmb,attn
NAME='interleave_layers__softmax_full_mha__glu_gated_glu__prompt'
def build(extra=0):
    e=E()
    prep.gen(e); qkv.gen(e); attn.gen(e); gemmb.gen(e,'wo'); gu.gen(e); gemmb.gen(e,'dn')
    for L in (0,1):
        qkv.launch(e,L); attn.launch(e); gemmb.launch(e,'wo',L); gu.launch(e,L); gemmb.launch(e,'dn',L)
    hdr=[]
    for l in open(f'cdna_kernels/{NAME}.s.ref').read().split('\n'):
        if l.startswith('; Override'): break
        hdr.append(l)
    return '\n'.join(hdr+e.launch+['.amdgcn_target "amdgcn-amd-amdhsa--gfx950"','.text']+e.l+['.section .rodata,"a"']+e.kds)+'\n'
if __name__=='__main__':
    if 'prof' in sys.argv: PROF[0]=True
    if 'fb' in sys.argv: attn.FORCE_FALLBACK=True
    out=sys.argv[1] if len(sys.argv)>1 else f'cdna_kernels/{NAME}.s'
    open(out,'w').write(build())
```

```python
XF=[0x0,0x200000,0x400000,0x600000]
WQKV=0x800000; WO=0xA00000; WGU=0xC00000; WD=0x1000000
QB=0x1200000; KVB=0x1400000; OF=0x1800000; HF=0x1A00000
WS_BYTES=0x2700000
KV1=0x2200000; CNT=0x2600000
ST=[0x2100000+i*0x40000 for i in range(4)]
PROF=[False]
PROFB=0x2800000
class E:
    def __init__(s): s.l=[]; s.kds=[]; s.launch=[]
    def __call__(s,t):
        for x in t.split('\n'):
            x=x.strip()
            if x: s.l.append(x if x.endswith(':') or x.startswith('.') else '  '+x)
    def kernel(s,name):
        s(f'.globl {name}\n.p2align 8\n.type {name},@function\n{name}:')
    def kd(s,name,vg,acc,sg=96):
        s.kds.append(f'''.p2align 6
.amdhsa_kernel {name}
  .amdhsa_next_free_vgpr {vg}
  .amdhsa_next_free_sgpr {sg}
  .amdhsa_accum_offset {acc}
  .amdhsa_group_segment_fixed_size 0
  .amdhsa_kernarg_size 80
  .amdhsa_user_sgpr_count 2
  .amdhsa_user_sgpr_kernarg_segment_ptr 1
  .amdhsa_system_sgpr_workgroup_id_x 1
.end_amdhsa_kernel''')
    def pstart(s):
        if PROF[0]: s('s_memrealtime s[64:65]\ns_memtime s[66:67]\ns_load_dwordx2 s[62:63], s[0:1], 64\ns_mov_b32 s61, s2\n'+'\n'.join(f's_mov_b32 s{r}, 0' for r in range(68,80)))
    def stamp(s,n):
        if PROF[0]: s(f's_memtime s[{68+2*n}:{69+2*n}]\ns_waitcnt lgkmcnt(0)')
    def end(s):
        if PROF[0]:
            s('s_waitcnt vmcnt(0)\ns_memrealtime s[80:81]\ns_memtime s[82:83]\ns_bfe_u32 s62, s62, 0x60009\ns_lshl_b32 s62, s62, 17\ns_lshl_b32 s61, s61, 8\ns_add_u32 s62, s62, s61\ns_lshl_b32 s61, s20, 5\ns_add_u32 s62, s62, s61')
            s(f's_add_u32 s62, s62, {PROFB}\ns_mov_b32 s26, {PROFB+0x800000}\ns_mov_b64 exec, 1\ns_waitcnt lgkmcnt(0)')
            for i,r in enumerate((64,80,66,68,70,72,74,82)): s(f'v_mov_b32 v{4+i}, s{r}')
            s('v_mov_b32 v3, 0\nbuffer_store_dwordx4 v[4:7], v3, s[24:27], s62 offen\nbuffer_store_dwordx4 v[8:11], v3, s[24:27], s62 offen offset:16')
        s('s_endpgm')
    def rt(s,n):
        if PROF[0]: s(f's_memrealtime s[62:63]\ns_waitcnt lgkmcnt(0)\ns_mov_b32 s{64+n}, s62')
    def rtflush(s):
        if PROF[0]:
            s(f's_add_u32 s62, s56, 1\ns_lshl_b32 s62, s62, 17\ns_lshl_b32 s63, s2, 8\ns_add_u32 s62, s62, s63\ns_lshl_b32 s63, s20, 6\ns_add_u32 s62, s62, s63\ns_add_u32 s62, s62, {PROFB}\ns_mov_b32 s26, {PROFB+0x800000}\ns_mov_b64 exec, 1')
            for i in range(16): s(f'v_mov_b32 v{64+i}, s{64+i}')
            s('v_mov_b32 v80, 0')
            for q in range(4): s(f'buffer_store_dwordx4 v[{64+4*q}:{67+4*q}], v80, s[24:27], s62 offen offset:{16*q}')
            s(f's_nop 1\ns_mov_b64 exec, -1\ns_mov_b32 s26, {WS_BYTES}')
    def srd(s,r,p,n):
        s(f's_mov_b32 s{r}, s{p}\ns_and_b32 s{r+1}, s{p+1}, 0xffff\ns_mov_b32 s{r+2}, {n}\ns_mov_b32 s{r+3}, 0x20000')
def R(base,n=4):
    if base>=256:
        b=base-256; return f'a[{b}:{b+n-1}]' if n>1 else f'a{b}'
    return f'v[{base}:{base+n-1}]' if n>1 else f'v{base}'
class VM:
    def __init__(s,e): s.e=e; s.q=[]
    def issue(s,tag): s.q.append(tag)
    def wait(s,tag):
        idx=[i for i,t in enumerate(s.q) if t==tag]
        if not idx: return
        n=len(s.q)-1-idx[-1]
        assert n<=63
        s.e(f's_waitcnt vmcnt({n})'); s.q=s.q[idx[-1]+1:]

def spread(e,mf,fill):
    n=len(mf); k=0
    for i,m in enumerate(mf):
        e(m)
        t=(len(fill)*(i+1)+n-1)//n
        while k<t:
            f=fill[k]; k+=1
            f() if callable(f) else e(f)
def stats_loads(e,vm,r,soff,sc=''):
    for s_ in range(14):
        e(f'buffer_load_dword v{r+s_}, v3, s[24:27], {soff} offen offset:{s_*256}{sc}'); vm.issue('st')
def stats_calc(r):
    o=[f'v_add_f32 v{r+i}, v{r+i}, v{r+i+7}' for i in range(7)]
    o+=[f'v_add_f32 v{r}, v{r}, v{r+1}',f'v_add_f32 v{r+2}, v{r+2}, v{r+3}',f'v_add_f32 v{r+4}, v{r+4}, v{r+5}',f'v_add_f32 v{r}, v{r}, v{r+6}',f'v_add_f32 v{r+2}, v{r+2}, v{r+4}',f'v_add_f32 v{r}, v{r}, v{r+2}',
        f'v_mul_f32 v{r}, 0x3b124925, v{r}',f'v_mov_b32 v{r+1}, v{r}','s_nop 1',f'v_permlane32_swap_b32 v{r}, v{r+1}','s_nop 1',
        f'v_fma_f32 v{r}, -v{r}, v{r}, v{r+1}',f'v_max_f32 v{r}, 0, v{r}',f'v_add_f32 v{r}, 0x3727c5ac, v{r}',f'v_rsq_f32 v{r}, v{r}','s_nop 0']
    return o
```

```python
from common import *
FORCE_FALLBACK=False
QX=86016; RS=94208; FLAG=95232; MX=95488; RED=98304; RS2=147456; X3=86016; LDS=148480
XR=248
SC=' sc1'
uid=[0]
def signal(e,ph,g,check=None):
    uid[0]+=1; u=uid[0]
    e('s_waitcnt vmcnt(0) lgkmcnt(0)\ns_barrier')
    if check: check()
    e(f'''s_cmp_eq_u32 s20, 0
    s_cbranch_scc0 sig{u}
    s_lshl_b32 s4, {g}, 8
    s_add_u32 s4, s4, s59
    s_add_u32 s4, s4, {ph*4096}
    s_mov_b64 exec, 1
    v_mov_b32 v4, 1
    buffer_atomic_add v4, v1, s[24:27], s4 offen sc1
    s_mov_b64 exec, -1
    sig{u}:''')
def wait(e,ph,g,n,back=0):
    uid[0]+=1; u=uid[0]
    e(f'''s_cmp_eq_u32 s20, 0
    s_cbranch_scc0 wt{u}d
    s_lshl_b32 s4, {g}, 8
    s_add_u32 s4, s4, s59
    s_add_u32 s4, s4, {ph*4096-back}
    s_mov_b32 s5, 0x8000
    wt{u}:
    buffer_load_dword v4, v1, s[24:27], s4 offen sc1
    s_sub_u32 s5, s5, 1
    s_cbranch_scc1 wt{u}d
    s_waitcnt vmcnt(0)
    v_readfirstlane_b32 s6, v4
    s_cmp_lt_u32 s6, {n}
    s_cbranch_scc1 wt{u}
    wt{u}d:
    s_waitcnt vmcnt(0)
    s_barrier''')
def mfma(d,a,b,first): return f'v_mfma_f32_32x32x16_bf16 {R(d,16)}, {R(a)}, {R(b)}, {"0" if first else R(d,16)}'
def qkv_wpre(e,a,b):
    for i in range(a,b):
        st,q=divmod(i,3)
        if q==0: e(f's_add_u32 m0, s42, {st*12288}\ns_add_u32 s45, s43, {st*12288}')
        e(f'buffer_load_dwordx4 v2, s[24:27], s45 offen offset:{q*1024} lds')
def reduce4(e,A,T):
    for p in (1,2,3):
        for q in range(4): e(f'ds_write_b128 v{5+p}, {R(A+16*p+4*q)} offset:{q*1024}')
    e('s_waitcnt lgkmcnt(0)\ns_barrier')
    for p in range(3):
        for q in range(4): e(f'ds_read_b128 {R(T+16*p+4*q)}, v5 offset:{p*4096+q*1024}')
def reduce4b(e,A,T):
    for p in range(3):
        e(f's_waitcnt lgkmcnt({8-4*p})')
        for r in range(16): e(f'v_add_f32 v{A+r}, v{A+r}, v{T+16*p+r}')
def red_addr(e):
    for p in (1,2,3):
        e(f's_xor_b32 s4, s20, {p}\ns_mul_i32 s4, s4, 12288\ns_add_u32 s4, s4, {RED+(p-1)*4096}\nv_add_u32 v{5+p}, s4, v2')
    e(f's_mul_i32 s4, s20, 12288\ns_add_u32 s4, s4, {RED}\nv_add_u32 v5, s4, v2')
def resid_epi(e,xo,so):
    for q in range(8): e(f'v_lshlrev_b32 v{32+2*q}, 16, v{XR+q}\nv_and_b32 v{33+2*q}, 0xffff0000, v{XR+q}')
    for r in range(16): e(f'v_add_f32 v{16+r}, v{16+r}, v{32+r}')
    reduce4b(e,16,80)
    for q in range(8): e(f'v_cvt_pk_bf16_f32 v{XR+q}, v{16+2*q}, v{17+2*q}')
def resid_store(e,xo,so):
    e(f'''s_add_u32 s4, s49, {xo}
    buffer_store_dwordx4 {R(XR)}, v2, s[24:27], s4 offen{SC}
    buffer_store_dwordx4 {R(XR+4)}, v2, s[24:27], s4 offen offset:1024{SC}
    v_add_f32 v32, v16, v17
    v_add_f32 v33, v18, v19
    v_mul_f32 v34, v16, v16
    v_mul_f32 v35, v17, v17''')
    for r in range(18,32,2):
        if r>=20: e(f'v_add_f32 v32, v32, v{r}\nv_add_f32 v33, v33, v{r+1}')
        e(f'v_fmac_f32 v34, v{r}, v{r}\nv_fmac_f32 v35, v{r+1}, v{r+1}')
    e(f'''v_add_f32 v32, v32, v33
    v_add_f32 v34, v34, v35
    s_lshl_b32 s4, s12, 12
    s_lshl_b32 s5, s14, 8
    v_permlane32_swap_b32 v32, v34
    s_add_u32 s4, s4, s5
    s_add_u32 s4, s4, {so}
    s_nop 0
    v_add_f32 v32, v32, v34
    buffer_store_dword v32, v3, s[24:27], s4 offen{SC}''')

def gen(e):
    e.kernel('mega_kernel')
    e.rt(0)
    e(f'''s_load_dwordx2 s[18:19], s[0:1], 72
    s_load_dwordx2 s[16:17], s[0:1], 56
    s_cmp_ge_u32 s2, 256
    s_cbranch_scc1 mega_end
    v_lshrrev_b32 v1, 6, v0
    v_and_b32 v2, 63, v0
    v_readfirstlane_b32 s20, v1
    v_lshlrev_b32 v3, 2, v2
    v_lshlrev_b32 v2, 4, v2
    v_mov_b32 v1, 0
    s_and_b32 s4, s2, 7
    s_lshr_b32 s5, s2, 3
    s_lshr_b32 s6, s4, 1
    s_lshl_b32 s6, s6, 2
    s_lshr_b32 s7, s5, 3
    s_add_u32 s21, s6, s7
    s_and_b32 s23, s4, 1
    s_and_b32 s22, s5, 7
    s_lshl_b32 s57, s23, 3
    s_add_u32 s57, s57, s22
    s_lshl_b32 s10, s21, 2
    s_lshl_b32 s4, s23, 1
    s_add_u32 s12, s10, s4
    s_add_u32 s10, s10, s20
    s_and_b32 s4, s20, 1
    s_add_u32 s12, s12, s4
    s_xor_b32 s13, s12, 1
    s_lshl_b32 s14, s22, 1
    s_lshr_b32 s4, s20, 1
    s_add_u32 s14, s14, s4
    s_xor_b32 s15, s14, 1
    s_mul_i32 s49, s12, 28
    s_lshl_b32 s4, s14, 1
    s_add_u32 s49, s49, s4
    s_lshl_b32 s49, s49, 10
    s_mul_i32 s11, s23, 7
    s_add_u32 s11, s11, s22
    s_lshl_b32 s11, s11, 2
    s_add_u32 s11, s11, s20
    s_mul_i32 s42, s20, 3072
    s_mul_i32 s43, s57, 86016
    s_add_u32 s43, s43, s42
    s_add_u32 s43, s43, {WQKV}
    s_mov_b32 s56, 0
    s_mov_b32 s59, {CNT}
    s_mov_b32 s58, {KVB}
    s_mov_b32 s28, 0
    s_mov_b32 s29, -1
    s_waitcnt lgkmcnt(0)''')
    e.srd(24,18,WS_BYTES)
    qkv_wpre(e,0,21)
    e(f'buffer_load_dwordx4 {R(XR)}, v2, s[24:27], s49 offen\nbuffer_load_dwordx4 {R(XR+4)}, v2, s[24:27], s49 offen offset:1024')
    red_addr(e)
    e('s_waitcnt vmcnt(0)\ns_barrier\nlayer:')
    e.rt(1)
    X=64; WB=16; ACC=176; SR=40
    vm=VM(e)
    e(f'''s_mul_i32 s41, s10, 28672
    s_mul_i32 s4, s56, {XF[2]}
    s_add_u32 s41, s41, s4
    s_lshl_b32 s44, s10, 12
    s_mul_i32 s4, s56, {ST[2]-ST[0]}
    s_add_u32 s44, s44, s4
    s_add_u32 s44, s44, {ST[0]}''')
    def xl(ks):
        def f():
            if ks%4==0: e(f's_add_u32 s46, s41, {ks*1024}')
            e(f'buffer_load_dwordx4 {R(X+4*ks)}, v2, s[24:27], s46 offen offset:{(ks%4)*1024}{SC}'); vm.issue(('x',ks))
        return f
    def stl(i,r):
        def f():
            e(f'buffer_load_dword v{r+i}, v3, s[24:27], s44 offen offset:{i*256}{SC}'); vm.issue('st')
        return f
    for ks in range(8): xl(ks)()
    e(f'''s_lshl_b32 s4, s20, 7
    s_add_u32 s4, s4, {RS}
    v_and_b32 v12, 31, v0
    v_lshl_add_u32 v14, v12, 2, s4
    v_bfe_u32 v13, v0, 5, 1
    v_lshl_add_u32 v15, v13, 4, s4
    v_add_u32 v4, 0xc000, v2''')
    def rd(ks,WB):
        b=WB+12*(ks%2); a,o=('v2',ks*3072) if ks<16 else ('v4',ks*3072-0xc000)
        for j in range(3): e(f'ds_read_b128 v[{b+4*j}:{b+4*j+3}], {a} offset:{o+j*1024}')
    rd(0,WB)
    for ks in range(28):
        if ks==22:
            vm.wait('st')
            for o in stats_calc(SR): e(o)
            e(f'ds_write_b32 v14, v{SR}')
            for a in range(4): e(f'ds_read_b128 v[{224+4*a}:{227+4*a}], v15 offset:{32*a}')
        if ks+1<28: rd(ks+1,WB)
        vm.wait(('x',ks))
        if ks==0: e.rt(2)
        e(f's_waitcnt lgkmcnt({3 if ks+1<28 else 0})')
        b=WB+12*(ks%2)
        mf=[mfma(ACC,b,X+4*ks,ks==0),mfma(ACC+16,b+4,X+4*ks,ks==0),mfma(ACC+32,X+4*ks,b+8,ks==0)]
        fl=[xl(ks+8)] if ks+8<28 else []
        if 4<=ks<18: fl.append(stl(ks-4,SR))
        spread(e,mf,fl)
    e(f'''s_lshl_b32 s47, s57, 6
    s_add_u32 s47, s47, s10
    s_lshl_b32 s47, s47, 12
    s_add_u32 s47, s47, s58
    v_cmp_eq_u32 s[30:31], 28, v12
    v_mul_f32 v{SR+1}, 0x3e8b97f6, v{SR}
    v_mov_b32 v9, 0x3f803f80
    v_mov_b32 v10, 0x3f80
    v_mov_b32 v11, {FLAG}
    s_lshl_b32 s4, s20, 11
    s_add_u32 s4, s4, {QX}
    v_add_u32 v13, s4, v2
    ds_write_b32 v11, v1
    s_nop 2''')
    for j in (1,0,2):
        a=ACC+16*j; t=64+8*j
        for r in range(16): e(f'v_mul_f32 v{a+r}, v{[SR+1,SR,224+r][j]}, v{a+r}')
        for q in range(8): e(f'v_cvt_pk_bf16_f32 v{t+q}, v{a+2*q}, v{a+2*q+1}')
        if j==0:
            e(f'v_cndmask_b32 v{t+6}, v{t+6}, v1, s[28:29]\nv_cndmask_b32 v{t+7}, v{t+7}, v1, s[28:29]\ns_nop 1')
            e(mfma(96,72,64,True)); e(mfma(96,76,68,False))
        if j==1: e(f'v_cndmask_b32 v{t+6}, v{t+6}, v9, s[28:29]\nv_cndmask_b32 v{t+7}, v{t+7}, v10, s[28:29]')
        if j==2:
            for q in range(8): e(f'v_cndmask_b32 v{t+q}, v{t+q}, v9, s[30:31]')
        if j>0:
            o=(j-1)*2048
            e(f'buffer_store_dwordx4 {R(t)}, v2, s[24:27], s47 offen offset:{o}{SC}\nbuffer_store_dwordx4 {R(t+4)}, v2, s[24:27], s47 offen offset:{o+1024}{SC}')
    e('v_max3_f32 v16, v96, v97, v98')
    for r in range(3,15,2): e(f'v_max3_f32 v16, v16, v{96+r}, v{97+r}')
    e('''v_max_f32 v16, v16, v111
    v_mov_b32 v17, v16
    s_nop 1
    v_permlane32_swap_b32 v16, v17
    s_nop 1
    v_max_f32 v16, v16, v17
    v_cvt_pk_bf16_f32 v16, -v16, 0
    v_cndmask_b32 v70, v70, v16, s[28:29]
    ds_write_b128 v13, v[64:67]
    ds_write_b128 v13, v[68:71] offset:1024''')
    e.rt(3)
    signal(e,0,'s57')
    Q=12; O=44; S=(108,124); P=(140,148); RING=156; T=220
    for j in range(4):
        e(f's_xor_b32 s4, s20, {j}\ns_lshl_b32 s4, s4, 11\ns_add_u32 s4, s4, {QX}\nv_add_u32 v4, s4, v2\nds_read_b128 {R(Q+8*j)}, v4\nds_read_b128 {R(Q+8*j+4)}, v4 offset:1024')
    e(f'''s_lshl_b32 s44, s57, 18
    s_add_u32 s44, s44, s58
    s_lshl_b32 s4, s20, 16
    s_add_u32 s44, s44, s4
    s_mov_b32 s52, 0
    s_lshl_b32 s50, s14, 15
    s_lshl_b32 s51, s15, 15
    s_lshl_b32 s4, s20, 13
    s_add_u32 s4, s4, {WO}
    s_add_u32 s50, s50, s4
    s_add_u32 s51, s51, s4
    s_mul_i32 s53, s11, 57344
    s_add_u32 s53, s53, {WGU}''')
    wait(e,0,'s57',16)
    e.rt(4)
    vm=VM(e)
    def ring(kb,q): return RING+16*(kb%4)+4*q
    def kvl(kb,q):
        if q==0: e(f's_add_u32 s45, s44, {kb*4096}')
        e(f'buffer_load_dwordx4 {R(ring(kb,q))}, v2, s[24:27], s45 offen offset:{q*1024}{SC}'); vm.issue(kb)
    def pre(i):
        if i<16:
            ks,p=divmod(i,2)
            if i==8: e('s_add_u32 s50, s50, 4096\ns_add_u32 s51, s51, 4096')
            e(f'buffer_load_dwordx4 {R(256+192+8*ks+4*p)}, v2, s[24:27], s{50+p} offen offset:{(ks%4)*1024}')
        else:
            i-=16
            if i%4==0: e(f's_add_u32 s46, s53, {i*1024}')
            e(f'buffer_load_dwordx4 {R(256+4*i)}, v2, s[24:27], s46 offen offset:{(i%4)*1024}')
        vm.issue('p')
    e('attn_main:')
    for kb in range(3):
        for q in range(4): kvl(kb,q)
    def qk(t,h): e(mfma(S[t%2],ring(t//4,h),Q+8*(t%4)+4*h,h==0))
    def pv(t,h): e(mfma(O+16*(t%4),ring(t//4,2+h),P[t%2]+4*h,t<4 and h==0))
    def ex(t,a,b):
        for r in range(a,b): e(f'v_exp_f32 v{S[t%2]+r}, v{S[t%2]+r}')
    def cv(t,a,b):
        for q in range(a,b): e(f'v_cvt_pk_bf16_f32 v{P[t%2]+q}, v{S[t%2]+2*q}, v{S[t%2]+2*q+1}')
    e('s_waitcnt lgkmcnt(0)'); vm.wait(0); e.rt(5); qk(0,0); qk(0,1); e('s_nop 10')
    NT=64
    for t in range(NT):
        if t+1<NT:
            if (t+1)%4==0: vm.wait((t+1)//4)
            qk(t+1,0)
        ex(t,0,4)
        if t+1<NT: qk(t+1,1)
        ex(t,4,8); cv(t,0,2)
        if t>0: pv(t-1,1)
        if t//4+3<16: kvl(t//4+3,t%4)
        ex(t,8,12); cv(t,2,4); ex(t,12,14)
        pv(t,0)
        pre(t)
        ex(t,14,16); cv(t,4,8)
    e('s_nop 1'); pv(NT-1,1)
    e.rt(6)
    e(f'''s_sub_u32 s50, s50, 4096
    s_sub_u32 s51, s51, 4096
    s_lshl_b32 s4, s10, 5
    s_lshl_b32 s5, s57, 1
    s_add_u32 s4, s4, s5
    s_lshl_b32 s4, s4, 10
    s_add_u32 s47, s4, {OF}
    s_nop 7''')
    reduce4(e,O,RING); reduce4b(e,O,RING)
    e(f'''v_mov_b32 v{T}, v{O+12}
    v_mov_b32 v{T+1}, v{O+12}
    s_mov_b32 s5, {'0.5' if FORCE_FALLBACK else '0x4e800000'}
    s_nop 0
    v_permlane32_swap_b32 v{T}, v{T+1}
    s_nop 1
    v_rcp_f32 v{T}, v{T+1}
    v_cmp_nle_f32 vcc, 0x30800000, v{T+1}
    v_cmp_nge_f32 s[30:31], s5, v{T+1}''')
    for r in range(16): e(f'v_mul_f32 v{O+r}, v{O+r}, v{T}')
    for q in range(8): e(f'v_cvt_pk_bf16_f32 v{S[0]+q}, v{O+2*q}, v{O+2*q+1}')
    e(f'''buffer_store_dwordx4 {R(S[0])}, v2, s[24:27], s47 offen{SC}
    buffer_store_dwordx4 {R(S[0]+4)}, v2, s[24:27], s47 offen offset:1024{SC}
    s_or_b64 vcc, vcc, s[30:31]
    s_cbranch_vccz attn_ok
    v_mov_b32 v4, 1
    ds_write_b32 v11, v4
    attn_ok:''')
    e.rt(7)
    def chk():
        e('''ds_read_b32 v4, v11
        s_waitcnt lgkmcnt(0)
        v_readfirstlane_b32 s4, v4
        s_cmp_gt_u32 s4, s52
        s_cbranch_scc1 attn_fb''')
    signal(e,1,'s21',chk)
    e('s_cmp_eq_u32 s22, 7\ns_cbranch_scc1 idle')
    e(f'''s_lshl_b32 s44, s12, 15
    s_lshl_b32 s45, s13, 15
    s_lshl_b32 s4, s20, 13
    s_add_u32 s4, s4, {OF}
    s_add_u32 s44, s44, s4
    s_add_u32 s45, s45, s4''')
    wait(e,1,'s21',16)
    e.rt(8)
    vm=VM(e)
    for ks in range(8):
        if ks==4: e('s_add_u32 s44, s44, 4096\ns_add_u32 s45, s45, 4096')
        for p in range(2):
            e(f'buffer_load_dwordx4 {R(128+8*ks+4*p)}, v2, s[24:27], s{44+p} offen offset:{(ks%4)*1024}{SC}'); vm.issue(ks)
    for ks in range(8):
        vm.wait(ks)
        for p in range(4): e(mfma(16+16*p,256+192+8*ks+4*(p>>1),128+8*ks+4*(p&1),ks==0))
    e('s_nop 7\ns_nop 3')
    for i in range(48,56):
        if i%4==0: e(f's_add_u32 s46, s53, {i*1024}')
        e(f'buffer_load_dwordx4 {R(256+4*i)}, v2, s[24:27], s46 offen offset:{(i%4)*1024}')
    reduce4(e,16,80)
    e(f's_mul_i32 s54, s56, {XF[2]}\ns_add_u32 s54, s54, {XF[1]}\ns_mul_i32 s55, s56, {ST[2]-ST[0]}\ns_add_u32 s55, s55, {ST[1]}')
    resid_epi(e,0,0); resid_store(e,'s54','s55')
    e.rt(9)
    signal(e,2,'s21')
    XB=16; ACC=64; SR=40; PK=192
    e(f'''s_mul_i32 s41, s21, 114688
    s_add_u32 s41, s41, s54
    s_mul_i32 s50, s20, 7168
    s_add_u32 s51, s50, {X3}
    s_add_u32 s50, s50, s41
    s_add_u32 s50, s50, 86016
    s_lshl_b32 s4, s20, 10
    s_add_u32 s41, s41, s4
    s_lshl_b32 s44, s10, 12
    s_add_u32 s44, s44, s55
    s_lshl_b32 s4, s20, 7
    v_and_b32 v12, 31, v0
    v_lshlrev_b32 v13, 2, v12
    v_add_u32 v13, {RS2}, v13
    v_add_u32 v14, s4, v13
    v_add_u32 v15, {X3}, v2
    s_mul_i32 s4, s21, {4*112*1024}
    s_lshl_b32 s5, s11, 11
    s_add_u32 s4, s4, s5
    s_add_u32 s32, s4, {HF}
    s_add_u32 s33, s32, {112*1024}
    s_add_u32 s34, s33, {112*1024}
    s_add_u32 s35, s34, {112*1024}
    s_mul_i32 s36, s14, 114688
    s_mul_i32 s37, s15, 114688
    s_mul_i32 s4, s20, 28672
    s_add_u32 s4, s4, {WD}
    s_add_u32 s36, s36, s4
    s_add_u32 s37, s37, s4''')
    wait(e,2,'s21',14)
    e.rt(10)
    e('v_add_u32 v4, 0xc000, v2')
    vm=VM(e)
    def wreg(ks,u): return 256+8*ks+4*u
    def dl(st,q):
        def f():
            e(f's_add_u32 m0, s42, {st*12288+q*1024}\ns_add_u32 s45, s41, {st*4096+q*28672}')
            e(f'buffer_load_dwordx4 v2, s[24:27], s45 offen{SC} lds'); vm.issue(('d',st))
        return f
    def d3(q):
        def f():
            if q%4==0: e(f's_add_u32 m0, s51, {q*1024}\ns_add_u32 s45, s50, {q*1024}')
            e(f'buffer_load_dwordx4 v2, s[24:27], s45 offen offset:{(q%4)*1024}{SC} lds'); vm.issue('x3')
        return f
    def wd(ks,p):
        def f():
            if ks%4==0 and ks>0: e(f's_add_u32 s{36+p}, s{36+p}, 4096')
            e(f'buffer_load_dwordx4 {R(wreg(ks,p))}, v2, s[24:27], s{36+p} offen offset:{(ks%4)*1024}')
        return f
    AH=3
    for st in range(AH):
        for q in range(3): dl(st,q)()
    def rd3(ks): e(f'ds_read_b128 {R(224+4*(ks%4))}, v15 offset:{ks*1024}')
    vm.wait(('d',0)); e('s_barrier'); e.rt(11); rd(0,XB)
    for st in range(7):
        fill=[dl(st+AH,q) for q in range(3)] if st+AH<7 else []
        if st<2: fill+=[stl(i,SR) for i in range(7*st,7*st+7)]
        if st==4: fill+=[d3(q) for q in range(7)]
        for k in range(4):
            ks=4*st+k
            if ks==17:
                vm.wait('st')
                for o in stats_calc(SR): e(o)
                e(f'ds_write_b32 v14, v{SR}')
            if ks==21:
                for j in range(4): e(f'ds_read_b32 v{56+j}, v13 offset:{128*j}')
            if ks+1<28:
                if k==3: vm.wait(('d',st+1)); e('s_barrier')
                rd(ks+1,XB)
            e(f's_waitcnt lgkmcnt({3 if ks+1<28 else 0})')
            if ks==27:
                vm.wait('x3'); e('s_barrier')
                for q in range(3): rd3(q)
            b=XB+12*(ks%2)
            mf=[mfma(ACC+32*j+16*u,wreg(ks,u),b+4*j,ks==0) for j in range(3) for u in range(2)]
            fl=fill[3*k:3*k+3]
            if ks==22: fl=fl+[f'v_rcp_f32 v{44+j}, v{56+j}\nv_mul_f32 v{56+j}, 0xbfb8aa3b, v{56+j}' for j in range(4)]
            spread(e,mf,fl)
    def epi(j):
        G=ACC+32*j; U=G+16; t=PK+8*j; o=[]
        for h in (0,8):
            rr=range(h,h+8)
            o+=[f'v_mul_f32 v{G+r}, v{56+j}, v{G+r}' for r in rr]
            o+=[f'v_exp_f32 v{G+r}, v{G+r}' for r in rr]
            o+=[f'v_fma_f32 v{G+r}, v{G+r}, v{44+j}, v{44+j}' for r in rr]
            o+=[f'v_rcp_f32 v{G+r}, v{G+r}' for r in rr]
            o+=[f'v_mul_f32 v{U+r}, v{U+r}, v{G+r}' for r in rr]
            o+=[f'v_cvt_pk_bf16_f32 v{t+r//2}, v{U+r}, v{U+r+1}' for r in range(h,h+8,2)]
            o+=[f'buffer_store_dwordx4 v[{t+h//2}:{t+h//2+3}], v2, s[24:27], s{32+j} offen offset:{h*128}{SC}']
        return o
    ops=epi(0)+epi(1)+epi(2); n=len(ops)
    NPD=16
    for ks in range(28):
        if ks+3<28: rd3(ks+3)
        e(f's_waitcnt lgkmcnt({min(3,27-ks)})')
        mf=[mfma(ACC+96+16*u,wreg(ks,u),224+4*(ks%4),ks==0) for u in range(2)]
        fl=ops[n*ks//28:n*(ks+1)//28]
        if 2<=ks<NPD+2: fl=[wd(ks-2,0)]+fl+[wd(ks-2,1)]
        if ks==0: e(mf[0]); e(mf[1]); e('s_nop 7'); [e(x) for x in fl]
        else: spread(e,mf,fl)
    e('s_nop 7')
    for o in epi(3): e(o)
    e.rt(12)
    signal(e,3,'s21')
    for ks in range(NPD,28): wd(ks,0)(); wd(ks,1)()
    e(f'''s_mul_i32 s44, s12, 114688
    s_mul_i32 s45, s13, 114688
    s_mul_i32 s4, s20, 28672
    s_add_u32 s4, s4, {HF}
    s_add_u32 s44, s44, s4
    s_add_u32 s45, s45, s4''')
    wait(e,3,'s21',14)
    e.rt(13)
    vm=VM(e)
    D=10; PRE=8
    def hl(ks,p):
        def f():
            if ks%4==0 and ks>0: e(f's_add_u32 s{44+p}, s{44+p}, 4096')
            e(f'buffer_load_dwordx4 {R(128+8*(ks%D)+4*p)}, v2, s[24:27], s{44+p} offen offset:{(ks%4)*1024}{SC}'); vm.issue(ks)
        return f
    for ks in range(PRE): hl(ks,0)(); hl(ks,1)()
    for ks in range(28):
        vm.wait(ks)
        mf=[mfma(16+16*p,wreg(ks,p>>1),128+8*(ks%D)+4*(p&1),ks==0) for p in range(4)]
        spread(e,mf,[hl(ks+PRE,0),hl(ks+PRE,1)] if ks+PRE<28 else [])
    e.rt(14)
    e('s_cmp_eq_u32 s56, 1\ns_cbranch_scc1 dn_nopre')
    qkv_wpre(e,0,12)
    e('dn_nopre:\ns_nop 7\ns_nop 3')
    reduce4(e,16,80); resid_epi(e,0,0)
    e('s_cmp_eq_u32 s56, 1\ns_cbranch_scc1 final')
    resid_store(e,XF[2],ST[2])
    e.rt(15)
    signal(e,4,'s21')
    qkv_wpre(e,12,21)
    e('next:')
    e.rtflush()
    e(f's_mov_b32 s56, 1\ns_add_u32 s59, s59, 20480\ns_mov_b32 s58, {KV1}')
    wait(e,4,'s21',14,back=20480)
    e('s_branch layer\nidle:\ns_cmp_eq_u32 s56, 0\ns_cbranch_scc1 next')
    e.rtflush(); e('s_endpgm\nfinal:')
    e.srd(32,16,1835008)
    e(f'''v_and_b32 v9, 31, v0
    v_bfe_u32 v4, v0, 5, 1
    v_mul_u32_u24 v9, 896, v9
    v_lshl_add_u32 v9, v4, 4, v9
    s_mul_i32 s4, s12, 28672
    s_lshl_b32 s5, s14, 6
    s_add_u32 s4, s4, s5
    v_permlane32_swap_b32 v{XR}, v{XR+2}
    v_permlane32_swap_b32 v{XR+1}, v{XR+3}
    v_permlane32_swap_b32 v{XR+4}, v{XR+6}
    v_permlane32_swap_b32 v{XR+5}, v{XR+7}
    s_nop 1
    buffer_store_dwordx4 {R(XR)}, v9, s[32:35], s4 offen
    buffer_store_dwordx4 {R(XR+4)}, v9, s[32:35], s4 offen offset:32''')
    if PROF[0]: e('s_waitcnt vmcnt(0)')
    e.rt(15); e.rtflush(); e('s_endpgm')
    e('attn_fb:\ns_mov_b32 s52, 1\ns_mov_b32 s45, s44\ns_mov_b32 s4, 16')
    for j in range(4): e(f'v_mov_b32 v{T+j}, 0xff800000\nv_cndmask_b32 v{Q+8*j+6}, v{Q+8*j+6}, v1, s[28:29]')
    e(f'''attn_fbl:
    buffer_load_dwordx4 {R(RING)}, v2, s[24:27], s45 offen{SC}
    buffer_load_dwordx4 {R(RING+4)}, v2, s[24:27], s45 offen offset:1024{SC}
    s_add_u32 s45, s45, 4096
    s_waitcnt vmcnt(0)''')
    for j in range(4): e(mfma(O+16*j,RING,Q+8*j,True)); e(mfma(O+16*j,RING+4,Q+8*j+4,False))
    e('s_nop 15')
    for j in range(4):
        for r in range(0,16,2): e(f'v_max3_f32 v{T+j}, v{T+j}, v{O+16*j+r}, v{O+16*j+r+1}')
    e('s_sub_u32 s4, s4, 1\ns_cmp_lg_u32 s4, 0\ns_cbranch_scc1 attn_fbl\nv_and_b32 v4, 31, v0\nv_lshlrev_b32 v4, 2, v4')
    for j in range(4):
        e(f'''v_mov_b32 v{T+4}, v{T+j}
        s_xor_b32 s4, s20, {j}
        s_lshl_b32 s4, s4, 9
        v_permlane32_swap_b32 v{T+j}, v{T+4}
        s_add_u32 s4, s4, {MX}
        v_add_u32 v{T+8+j}, s4, v4
        s_lshl_b32 s5, s20, 7
        v_max_f32 v{T+j}, v{T+j}, v{T+4}
        v_add_u32 v{T+5}, s5, v{T+8+j}
        ds_write_b32 v{T+5}, v{T+j}''')
    e('s_waitcnt lgkmcnt(0)\ns_barrier')
    for j in range(4):
        for k in range(4): e(f'ds_read_b32 v{O+4*j+k}, v{T+8+j} offset:{k*128}')
    e('s_waitcnt lgkmcnt(0)')
    for j in range(4):
        b=O+4*j
        e(f'''v_max3_f32 v{b}, v{b}, v{b+1}, v{b+2}
        v_max_f32 v{b}, v{b}, v{b+3}
        v_cvt_pk_bf16_f32 v{b+1}, -v{b}, 0
        v_lshlrev_b32 v{b+2}, 16, v{b+1}
        v_sub_f32 v{b}, -v{b}, v{b+2}
        v_cvt_pk_bf16_f32 v{b+2}, v{b}, 0
        v_lshlrev_b32 v{b+2}, 16, v{b+2}
        v_sub_f32 v{b}, v{b}, v{b+2}
        v_or_b32 v{b+1}, v{b+1}, v{b+2}
        v_cvt_pk_bf16_f32 v{b}, v{b}, 0
        v_cndmask_b32 v{Q+8*j+6}, v{Q+8*j+6}, v{b+1}, s[28:29]
        v_cndmask_b32 v{Q+8*j+7}, v{Q+8*j+7}, v{b}, s[28:29]''')
    e('s_branch attn_main\nmega_end:\ns_endpgm')
    e.kd('mega_kernel',512,256)
    e.launch.append(f'; @launch kernel=mega_kernel grid=(256,1,1) block=(256,1,1) lds={LDS}')
```

```python
from common import *
def gen(e):
    e.kernel('prep_kernel'); e.pstart()
    e('''s_load_dwordx4 s[4:7], s[0:1], 0
    s_load_dwordx2 s[8:9], s[0:1], 16
    s_load_dwordx4 s[12:15], s[0:1], 32
    s_load_dwordx2 s[16:17], s[0:1], 48
    s_load_dwordx2 s[18:19], s[0:1], 72
    s_cmp_ge_u32 s2, 294
    s_cbranch_scc1 prep_end
    v_lshrrev_b32 v1, 6, v0
    v_and_b32 v2, 31, v0
    v_readfirstlane_b32 s20, v1
    v_bfe_u32 v3, v0, 5, 1
    v_and_b32 v4, 63, v0
    v_lshlrev_b32 v4, 4, v4
    s_waitcnt lgkmcnt(0)''')
    e.srd(24,18,WS_BYTES)
    e('s_cmp_ge_u32 s2, 230\ns_cbranch_scc1 prep_x')
    e(f'''s_mov_b32 s31, 0x20000
    s_mov_b32 s37, 1
    s_mov_b32 s38, 7
    s_mov_b32 s39, 32
    s_mov_b32 s40, 0
    s_mov_b32 s36, 1024
    s_mul_i32 s34, s20, 7
    s_cmp_ge_u32 s2, 48
    s_cbranch_scc1 prep_t1
    s_mov_b32 s28, s6
    s_and_b32 s29, s7, 0xffff
    s_mov_b32 s30, 1204224
    s_mov_b32 s32, 2688
    s_mul_i32 s33, s2, 56
    s_mov_b32 s39, 28
    s_mov_b32 s36, 3072
    s_and_b32 s41, s2, 15
    s_lshr_b32 s42, s2, 4
    s_mul_i32 s35, s41, 28
    s_add_u32 s35, s35, s34
    s_mul_i32 s35, s35, 3
    s_add_u32 s35, s35, s42
    s_lshl_b32 s35, s35, 10
    s_add_u32 s35, s35, {WQKV}
    s_branch prep_go
    prep_t1:
    s_cmp_ge_u32 s2, 160
    s_cbranch_scc1 prep_t2
    s_sub_u32 s41, s2, 48
    s_and_b32 s42, s41, 1
    s_lshr_b32 s41, s41, 1
    s_cmp_eq_u32 s42, 0
    s_cselect_b32 s28, s12, s14
    s_cselect_b32 s29, s13, s15
    s_and_b32 s29, s29, 0xffff
    s_mov_b32 s30, 1605632
    s_mov_b32 s32, 3584
    s_lshl_b32 s33, s41, 6
    s_mov_b32 s36, 2048
    s_mul_i32 s35, s41, 28
    s_add_u32 s35, s35, s34
    s_lshl_b32 s35, s35, 1
    s_add_u32 s35, s35, s42
    s_lshl_b32 s35, s35, 10
    s_add_u32 s35, s35, {WGU}
    s_branch prep_go
    prep_t2:
    s_mov_b32 s37, 0
    s_mov_b32 s32, 896
    s_cmp_ge_u32 s2, 174
    s_cbranch_scc1 prep_t3
    s_sub_u32 s41, s2, 160
    s_mov_b32 s28, s8
    s_and_b32 s29, s9, 0xffff
    s_mov_b32 s30, 401408
    s_lshl_b32 s33, s41, 6
    s_mov_b32 s38, 8
    s_mov_b32 s40, 1
    s_lshl_b32 s34, s20, 3
    s_lshl_b32 s35, s41, 5
    s_add_u32 s35, s35, s34
    s_lshl_b32 s35, s35, 10
    s_add_u32 s35, s35, {WO}
    s_branch prep_go
    prep_t3:
    s_sub_u32 s41, s2, 174
    s_and_b32 s42, s41, 3
    s_lshr_b32 s41, s41, 2
    s_mov_b32 s28, s16
    s_and_b32 s29, s17, 0xffff
    s_mov_b32 s30, 1605632
    s_lshl_b32 s33, s41, 6
    s_mul_i32 s42, s42, 28
    s_add_u32 s34, s34, s42
    s_mul_i32 s35, s41, 112
    s_add_u32 s35, s35, s34
    s_lshl_b32 s35, s35, 10
    s_add_u32 s35, s35, {WD}
    prep_go:''')
    e('''v_bfe_u32 v5, v0, 2, 4
    v_mul_lo_u32 v5, v5, s32
    v_and_b32 v6, 3, v0
    v_lshl_add_u32 v5, v6, 4, v5
    v_add_u32 v5, s33, v5
    s_lshl_b32 s47, s20, 13
    v_add_u32 v7, s47, v4''')
    for k in range(8):
        if k==7: e('s_cmp_lt_u32 s38, 8\ns_cbranch_scc1 prep_ld_done')
        e(f's_add_u32 s41, s34, {k}\ns_lshl_b32 s42, s41, 4\ns_lshr_b32 s43, s41, 1\ns_lshl_b32 s43, s43, 2\ns_mul_i32 s43, s43, s40\ns_sub_u32 s42, s42, s43\ns_mul_i32 s42, s42, s32')
        e(f'buffer_load_dwordx4 {R(80+4*k)}, v5, s[28:31], s42 offen')
    e('prep_ld_done:'); e.stamp(0)
    e('''v_bfe_u32 v8, v0, 2, 2
    v_lshl_add_u32 v8, v3, 2, v8
    v_lshlrev_b32 v8, 6, v8
    v_bfe_u32 v9, v0, 4, 1
    v_lshl_add_u32 v8, v9, 5, v8
    v_lshl_add_u32 v8, v6, 3, v8
    v_add_u32 v8, s47, v8
    v_cmp_gt_u32 s[48:49], s39, v2
    v_cmp_ne_u32 vcc, 0, v3
    s_cmp_eq_u32 s40, 1
    s_cselect_b64 s[44:45], vcc, 0
    v_mov_b32 v9, 0
    s_waitcnt vmcnt(0)''')
    e.stamp(1)
    for k in range(8): e(f'ds_write_b128 v7, {R(80+4*k)} offset:{k*1024}')
    for k in range(8):
        e(f'ds_read_b64_tr_b16 v[{112+4*k}:{113+4*k}], v8 offset:{k*1024}\nds_read_b64_tr_b16 v[{114+4*k}:{115+4*k}], v8 offset:{k*1024+512}')
    e('s_waitcnt lgkmcnt(0)')
    for k in range(1,8,2): e(f'v_cndmask_b32 v{114+4*k}, v{114+4*k}, v9, s[44:45]\nv_cndmask_b32 v{115+4*k}, v{115+4*k}, v9, s[44:45]')
    e('s_cmp_eq_u32 s37, 0\ns_cbranch_scc1 prep_nocenter')
    for r in range(28): e(f'v_cndmask_b32 v{112+r}, v9, v{112+r}, s[48:49]')
    for r in range(28): e(f'v_lshlrev_b32 v{16+2*r}, 16, v{112+r}\nv_and_b32 v{17+2*r}, 0xffff0000, v{112+r}')
    for c in range(4): e(f'v_add_f32 v{10+c}, v{16+c}, v{20+c}')
    for r in range(24,72): e(f'v_add_f32 v{10+r%4}, v{10+r%4}, v{r}')
    e('''v_add_f32 v10, v10, v11
    v_add_f32 v12, v12, v13
    v_add_f32 v10, v10, v12
    v_lshlrev_b32 v11, 2, v0
    ds_write_b32 v11, v10 offset:32768
    s_waitcnt lgkmcnt(0)
    s_barrier
    v_lshlrev_b32 v11, 2, v2''')
    for i in range(8): e(f'ds_read_b32 v{80+i}, v11 offset:{32768+i*128}')
    e('s_waitcnt lgkmcnt(0)')
    for i in range(1,8): e(f'v_add_f32 v80, v80, v{80+i}')
    e('v_mul_f32 v80, 0x3b124925, v80')
    for r in range(16,72): e(f'v_sub_f32 v{r}, v{r}, v80')
    for p in range(4):
        for k in range(7):
            a=16+8*k+2*p
            if p>0: e(f'v_add_f32 v{a}, v{a}, v{88+k}')
        for k in range(7): e(f'v_cvt_pk_bf16_f32 v{112+4*k+p}, v{16+8*k+2*p}, v{16+8*k+2*p}')
        for k in range(7): e(f'v_and_b32 v{96+k}, 0xffff0000, v{112+4*k+p}')
        for k in range(7): e(f'v_sub_f32 v{96+k}, v{16+8*k+2*p}, v{96+k}')
        for k in range(7): e(f'v_add_f32 v{17+8*k+2*p}, v{17+8*k+2*p}, v{96+k}')
        for k in range(7): e(f'v_cvt_pk_bf16_f32 v{112+4*k+p}, v{16+8*k+2*p}, v{17+8*k+2*p}')
        if p<3:
            for k in range(7): e(f'v_and_b32 v{88+k}, 0xffff0000, v{112+4*k+p}')
            for k in range(7): e(f'v_sub_f32 v{88+k}, v{17+8*k+2*p}, v{88+k}')
    e('prep_nocenter:')
    for k in range(8):
        if k==7: e('s_cmp_lt_u32 s38, 8\ns_cbranch_scc1 prep_fin')
        e(f'buffer_store_dwordx4 {R(112+4*k)}, v4, s[24:27], s35 offen\ns_add_u32 s35, s35, s36')
    e('prep_fin:'); e.end(); e('prep_x:')
    e.srd(28,4,1835008)
    e(f'''s_sub_u32 s41, s2, 230
    s_lshl_b32 s41, s41, 10
    s_add_u32 s41, s41, {CNT}
    v_mov_b32 v12, 0
    v_lshlrev_b32 v13, 2, v0
    buffer_store_dword v12, v13, s[24:27], s41 offen''')
    e(f'''s_sub_u32 s41, s2, 230
    s_mul_i32 s34, s20, 7
    s_mul_i32 s42, s41, 28672
    s_lshl_b32 s43, s34, 5
    s_add_u32 s42, s42, s43
    v_mul_u32_u24 v5, 896, v2
    v_lshl_add_u32 v5, v3, 3, v5
    s_mul_i32 s35, s41, 28
    s_add_u32 s35, s35, s34
    s_lshl_b32 s35, s35, 10
    s_lshl_b32 s36, s41, 12
    s_lshl_b32 s37, s20, 8
    s_add_u32 s36, s36, s37
    s_add_u32 s36, s36, {ST[0]}
    s_mov_b32 s44, 0x3f803f80
    v_mov_b32 v8, 0
    v_mov_b32 v9, 0
    v_mov_b32 v10, 0
    v_lshrrev_b32 v6, 2, v4''')
    for k in range(7):
        e(f'buffer_load_dwordx2 v[{16+4*k}:{17+4*k}], v5, s[28:31], s42 offen offset:{32*k}\nbuffer_load_dwordx2 v[{18+4*k}:{19+4*k}], v5, s[28:31], s42 offen offset:{32*k+16}')
    for q in (1,2,3): e(f'buffer_store_dword v10, v6, s[24:27], s36 offen offset:{1024*q}')
    for k in range(7):
        e(f's_waitcnt vmcnt({15-2*k+k})\nbuffer_store_dwordx4 v[{16+4*k}:{19+4*k}], v4, s[24:27], s35 offen\ns_add_u32 s35, s35, 1024')
        for q in range(4): e(f'v_dot2_f32_bf16 v8, v{16+4*k+q}, s44, v8\nv_dot2_f32_bf16 v9, v{16+4*k+q}, v{16+4*k+q}, v9')
    e('s_nop 4\nv_permlane32_swap_b32 v8, v9\ns_nop 1\nv_add_f32 v8, v8, v9\nbuffer_store_dword v8, v6, s[24:27], s36 offen')
    e.end(); e('prep_end:\ns_endpgm')
    e.kd('prep_kernel',144,144)
    e.launch.append('; @launch kernel=prep_kernel grid=(294,1,1) block=(256,1,1) lds=33792')
```

```python
import sys
from common import *
import prep,mega
NAME='interleave_layers__softmax_full_mha__glu_gated_glu__prompt'
def build():
    e=E()
    mega.gen(e)
    hdr=[]
    for l in open(f'cdna_kernels/{NAME}.s.ref').read().split('\n'):
        if l.startswith('; Override'): break
        hdr.append(l)
    return '\n'.join(hdr+e.launch+['.amdgcn_target "amdgcn-amd-amdhsa--gfx950"','.text']+e.l+['.section .rodata,"a"']+e.kds)+'\n'
if __name__=='__main__':
    if 'prof' in sys.argv: PROF[0]=True
    if 'fb' in sys.argv: mega.FORCE_FALLBACK=True
    out=sys.argv[1] if len(sys.argv)>1 else f'cdna_kernels/{NAME}.s'
    open(out,'w').write(build())
```

```python
XF=[0x0,0x200000,0x400000,0x600000]
WQKV=0x800000; WO=0xA00000; WGU=0xC00000; WD=0x1000000
QB=0x1200000; KVB=0x1400000; OF=0x1800000; HF=0x1A00000
WS_BYTES=0x3000000
OF1=0x1200000; HF1=0x2700000
KV1=0x2200000; CNT=0x2600000
ST=[0x2100000+i*0x40000 for i in range(4)]
PROF=[False]
PROFB=0x3100000
class E:
    def __init__(s): s.l=[]; s.kds=[]; s.launch=[]
    def __call__(s,t):
        for x in t.split('\n'):
            x=x.strip()
            if x: s.l.append(x if x.endswith(':') or x.startswith('.') else '  '+x)
    def kernel(s,name):
        s(f'.globl {name}\n.p2align 8\n.type {name},@function\n{name}:')
    def kd(s,name,vg,acc,sg=96):
        s.kds.append(f'''.p2align 6
.amdhsa_kernel {name}
  .amdhsa_next_free_vgpr {vg}
  .amdhsa_next_free_sgpr {sg}
  .amdhsa_accum_offset {acc}
  .amdhsa_group_segment_fixed_size 0
  .amdhsa_kernarg_size 80
  .amdhsa_user_sgpr_count 2
  .amdhsa_user_sgpr_kernarg_segment_ptr 1
  .amdhsa_system_sgpr_workgroup_id_x 1
.end_amdhsa_kernel''')
    def pstart(s):
        if PROF[0]: s('s_memrealtime s[64:65]\ns_memtime s[66:67]\ns_load_dwordx2 s[62:63], s[0:1], 64\ns_mov_b32 s61, s2\n'+'\n'.join(f's_mov_b32 s{r}, 0' for r in range(68,80)))
    def stamp(s,n):
        if PROF[0]: s(f's_memtime s[{68+2*n}:{69+2*n}]\ns_waitcnt lgkmcnt(0)')
    def end(s):
        if PROF[0]:
            s('s_waitcnt vmcnt(0)\ns_memrealtime s[80:81]\ns_memtime s[82:83]\ns_bfe_u32 s62, s62, 0x60009\ns_lshl_b32 s62, s62, 17\ns_lshl_b32 s61, s61, 8\ns_add_u32 s62, s62, s61\ns_lshl_b32 s61, s20, 5\ns_add_u32 s62, s62, s61')
            s(f's_add_u32 s62, s62, {PROFB}\ns_mov_b32 s26, {PROFB+0x800000}\ns_mov_b64 exec, 1\ns_waitcnt lgkmcnt(0)')
            for i,r in enumerate((64,80,66,68,70,72,74,82)): s(f'v_mov_b32 v{4+i}, s{r}')
            s('v_mov_b32 v3, 0\nbuffer_store_dwordx4 v[4:7], v3, s[24:27], s62 offen\nbuffer_store_dwordx4 v[8:11], v3, s[24:27], s62 offen offset:16')
        s('s_endpgm')
    def rt(s,n,pst=False):
        P=__import__('os').environ.get('PST')
        if (pst and not P) or (P and not pst and n in (2,3,4,5,6)): return
        if PROF[0]: s(f'{"s_memtime" if __import__("os").environ.get("CYC") else "s_memrealtime"} s[62:63]\ns_waitcnt lgkmcnt(0)\ns_mov_b32 s{64+n}, s62')
    def rtflush(s):
        if PROF[0]:
            s(f's_add_u32 s62, s56, 1\ns_lshl_b32 s62, s62, 17\ns_lshl_b32 s63, s2, 8\ns_add_u32 s62, s62, s63\ns_lshl_b32 s63, s20, 6\ns_add_u32 s62, s62, s63\ns_add_u32 s62, s62, {PROFB}\ns_mov_b32 s26, {PROFB+0x800000}\ns_mov_b64 exec, 1')
            for i in range(16): s(f'v_mov_b32 v{64+i}, s{64+i}')
            s('v_mov_b32 v80, 0')
            for q in range(4): s(f'buffer_store_dwordx4 v[{64+4*q}:{67+4*q}], v80, s[24:27], s62 offen offset:{16*q}')
            s(f's_nop 1\ns_mov_b64 exec, -1\ns_mov_b32 s26, {WS_BYTES}')
    def srd(s,r,p,n):
        s(f's_mov_b32 s{r}, s{p}\ns_and_b32 s{r+1}, s{p+1}, 0xffff\ns_mov_b32 s{r+2}, {n}\ns_mov_b32 s{r+3}, 0x20000')
def R(base,n=4):
    if base>=256:
        b=base-256; return f'a[{b}:{b+n-1}]' if n>1 else f'a{b}'
    return f'v[{base}:{base+n-1}]' if n>1 else f'v{base}'
class VM:
    def __init__(s,e,c='vmcnt',m=63): s.e=e; s.q=[]; s.c=c; s.m=m
    def issue(s,tag): s.q.append(tag)
    def wait(s,tag):
        idx=[i for i,t in enumerate(s.q) if t==tag]
        if not idx: return
        n=len(s.q)-1-idx[-1]
        assert n<=s.m
        s.e(f's_waitcnt {s.c}({n})'); s.q=s.q[idx[-1]+1:]

def spread(e,mf,fill):
    n=len(mf); k=0
    for i,m in enumerate(mf):
        e(m)
        t=(len(fill)*(i+1)+n-1)//n
        while k<t:
            f=fill[k]; k+=1
            f() if callable(f) else e(f)
def stats_loads(e,vm,r,soff,sc=''):
    for s_ in range(14):
        e(f'buffer_load_dword v{r+s_}, v3, s[24:27], {soff} offen offset:{s_*256}{sc}'); vm.issue('st')
def stats_calc(r):
    o=[f'v_add_f32 v{r+i}, v{r+i}, v{r+i+7}' for i in range(7)]
    o+=[f'v_add_f32 v{r}, v{r}, v{r+1}',f'v_add_f32 v{r+2}, v{r+2}, v{r+3}',f'v_add_f32 v{r+4}, v{r+4}, v{r+5}',f'v_add_f32 v{r}, v{r}, v{r+6}',f'v_add_f32 v{r+2}, v{r+2}, v{r+4}',f'v_add_f32 v{r}, v{r}, v{r+2}',
        f'v_mul_f32 v{r}, 0x3b124925, v{r}',f'v_mov_b32 v{r+1}, v{r}','s_nop 1',f'v_permlane32_swap_b32 v{r}, v{r+1}','s_nop 1',
        f'v_fma_f32 v{r}, -v{r}, v{r}, v{r+1}',f'v_max_f32 v{r}, 0, v{r}',f'v_add_f32 v{r}, 0x3727c5ac, v{r}',f'v_rsq_f32 v{r}, v{r}','s_nop 0']
    return o
```

```python
from common import *
import prep
SW=__import__('os').environ.get('SW',' sc1')
FORCE_FALLBACK=False
QX=86016; RS=94208; FLAG=95232; MX=95488; RED=98304; RS2=147456; X3=86016; LDS=148480
XR=248
SC=' sc1'
PA=int(__import__('os').environ.get('PA','44'))
PL=int(__import__('os').environ.get('PL','50'))
GUST=__import__('os').environ.get('GUST')
SL=__import__('os').environ.get('SL',' sc1')
SIGA=int(__import__('os').environ.get('SIGA','16'))
uid=[0]
def signal(e,ph,g,check=None,off=0,drain=True):
    uid[0]+=1; u=uid[0]
    if drain: e('s_waitcnt vmcnt(0) lgkmcnt(0)')
    e('s_barrier')
    if check: check()
    e(f'''s_cmp_eq_u32 s20, 0
    s_cbranch_scc0 sig{u}
    s_lshl_b32 s4, {g}, 8
    s_add_u32 s4, s4, s59
    s_add_u32 s4, s4, {ph*4096+off}
    s_mov_b64 exec, 1
    v_mov_b32 v4, 1
    buffer_atomic_add v4, v1, s[24:27], s4 offen sc1
    s_mov_b64 exec, -1
    sig{u}:''')
def wait(e,ph,g,n,back=0,drain=False):
    uid[0]+=1; u=uid[0]
    e(f'''s_cmp_eq_u32 s20, 0
    s_cbranch_scc0 wt{u}d
    s_lshl_b32 s4, {g}, 8
    s_add_u32 s4, s4, s59
    s_add_u32 s4, s4, {ph*4096-back}
    s_mov_b32 s5, 0x8000
    wt{u}:
    buffer_load_dword v4, v1, s[24:27], s4 offen sc1
    s_sub_u32 s5, s5, 1
    s_cbranch_scc1 wt{u}d
    s_waitcnt vmcnt(0)
    v_readfirstlane_b32 s6, v4
    s_cmp_lt_u32 s6, {n}
    s_cbranch_scc1 wt{u}
    wt{u}d:''')
    if drain: e('s_waitcnt vmcnt(0)')
    e('s_waitcnt lgkmcnt(0)\ns_barrier')
def mfma(d,a,b,first): return f'v_mfma_f32_32x32x16_bf16 {R(d,16)}, {R(a)}, {R(b)}, {"0" if first else R(d,16)}'
def qkv_wpre(e,a,b):
    for i in range(a,b):
        st,q=divmod(i,3)
        if q==0: e(f's_add_u32 m0, s42, {st*12288}\ns_add_u32 s45, s43, {st*12288}')
        e(f'buffer_load_dwordx4 v2, s[24:27], s45 offen offset:{q*1024}{SW} lds')
def reduce4(e,A,T):
    for p in (1,2,3):
        for q in range(4): e(f'ds_write_b128 v{5+p}, {R(A+16*p+4*q)} offset:{q*1024}')
    e('s_waitcnt lgkmcnt(0)\ns_barrier')
    for p in range(3):
        for q in range(4): e(f'ds_read_b128 {R(T+16*p+4*q)}, v5 offset:{p*4096+q*1024}')
def reduce4b(e,A,T):
    for p in range(3):
        e(f's_waitcnt lgkmcnt({8-4*p})')
        for r in range(16): e(f'v_add_f32 v{A+r}, v{A+r}, v{T+16*p+r}')
def red_addr(e):
    for p in (1,2,3):
        e(f's_xor_b32 s4, s20, {p}\ns_mul_i32 s4, s4, 12288\ns_add_u32 s4, s4, {RED+(p-1)*4096}\nv_add_u32 v{5+p}, s4, v2')
    e(f's_mul_i32 s4, s20, 12288\ns_add_u32 s4, s4, {RED}\nv_add_u32 v5, s4, v2')
def resid_epi(e,xo,so):
    for q in range(8): e(f'v_lshlrev_b32 v{32+2*q}, 16, v{XR+q}\nv_and_b32 v{33+2*q}, 0xffff0000, v{XR+q}')
    for r in range(16): e(f'v_add_f32 v{16+r}, v{16+r}, v{32+r}')
    reduce4b(e,16,80)
    for q in range(8): e(f'v_cvt_pk_bf16_f32 v{XR+q}, v{16+2*q}, v{17+2*q}')
def resid_store(e,xo,so):
    e(f'''s_add_u32 s4, s49, {xo}
    buffer_store_dwordx4 {R(XR)}, v2, s[24:27], s4 offen{SC}
    buffer_store_dwordx4 {R(XR+4)}, v2, s[24:27], s4 offen offset:1024{SC}
    v_add_f32 v32, v16, v17
    v_add_f32 v33, v18, v19
    v_mul_f32 v34, v16, v16
    v_mul_f32 v35, v17, v17''')
    for r in range(18,32,2):
        if r>=20: e(f'v_add_f32 v32, v32, v{r}\nv_add_f32 v33, v33, v{r+1}')
        e(f'v_fmac_f32 v34, v{r}, v{r}\nv_fmac_f32 v35, v{r+1}, v{r+1}')
    e(f'''v_add_f32 v32, v32, v33
    v_add_f32 v34, v34, v35
    s_lshl_b32 s4, s12, 12
    s_lshl_b32 s5, s14, 8
    v_permlane32_swap_b32 v32, v34
    s_add_u32 s4, s4, s5
    s_add_u32 s4, s4, {so}
    s_nop 0
    v_add_f32 v32, v32, v34
    buffer_store_dword v32, v3, s[24:27], s4 offen{SC}''')

def gen(e):
    e.kernel('mega_kernel')
    e.rt(0)
    prep.gen(e)
    e(f'''s_load_dwordx2 s[16:17], s[0:1], 56
    v_and_b32 v2, 63, v0
    v_lshlrev_b32 v3, 2, v2
    v_lshlrev_b32 v2, 4, v2
    s_lshl_b32 s10, s21, 2
    s_add_u32 s12, s10, s23
    s_add_u32 s10, s10, s20
    s_and_b32 s4, s20, 1
    s_lshl_b32 s4, s4, 1
    s_add_u32 s12, s12, s4
    s_xor_b32 s13, s12, 2
    s_lshl_b32 s14, s22, 1
    s_lshr_b32 s4, s20, 1
    s_add_u32 s14, s14, s4
    s_xor_b32 s15, s14, 1
    s_mul_i32 s49, s12, 28
    s_lshl_b32 s4, s14, 1
    s_add_u32 s49, s49, s4
    s_lshl_b32 s49, s49, 10
    s_mul_i32 s11, s23, 7
    s_add_u32 s11, s11, s22
    s_lshl_b32 s11, s11, 2
    s_add_u32 s11, s11, s20
    s_mul_i32 s42, s20, 3072
    s_mul_i32 s43, s57, 86016
    s_add_u32 s43, s43, s42
    s_add_u32 s43, s43, {WQKV}
    s_mov_b32 s56, 0
    s_mov_b32 s59, {CNT}
    s_mov_b32 s58, {KVB}
    s_mov_b32 s60, {OF}
    s_mov_b32 s61, {HF}
    s_mov_b32 s28, 0
    s_mov_b32 s29, -1
    s_waitcnt lgkmcnt(0)''')
    def vwait(lab,setup):
        e(f'''s_cmp_eq_u32 s20, 0
        s_cbranch_scc0 {lab}d
        {setup}
        s_mov_b32 s5, 0x8000
        {lab}:
        buffer_load_dword v4, v12, s[24:27], s4 offen sc1
        s_sub_u32 s5, s5, 1
        s_cbranch_scc1 {lab}d
        s_waitcnt vmcnt(0)
        v_cmp_lt_u32 vcc, v4, v13
        s_cbranch_vccnz {lab}
        {lab}d:''')
    vwait('w0',f'''s_lshl_b32 s4, s21, 8
    s_lshl_b32 s5, s57, 8
    s_add_u32 s5, s5, 4096
    v_mov_b32 v12, s4
    v_mov_b32 v13, s5
    v_cndmask_b32 v12, v12, v13, s[28:29]
    v_cndmask_b32 v13, 16, 3, s[28:29]
    s_mov_b32 s4, {CNT+10*4096}''')
    e('s_barrier'); e.rt(15)
    qkv_wpre(e,0,21)
    e(f'buffer_load_dwordx4 {R(XR)}, v2, s[24:27], s49 offen{SW}\nbuffer_load_dwordx4 {R(XR+4)}, v2, s[24:27], s49 offen offset:1024{SW}')
    red_addr(e)
    e('layer:')
    e.rt(1)
    X=64; WB=16; ACC=176; SR=40
    vm=VM(e)
    e(f'''s_mul_i32 s41, s10, 28672
    s_mul_i32 s4, s56, {XF[2]}
    s_add_u32 s41, s41, s4
    s_lshl_b32 s44, s10, 12
    s_mul_i32 s4, s56, {ST[2]-ST[0]}
    s_add_u32 s44, s44, s4
    s_add_u32 s44, s44, {ST[0]}''')
    def xl(ks):
        def f():
            if ks%4==0: e(f's_add_u32 s46, s41, {ks*1024}')
            e(f'buffer_load_dwordx4 {R(X+4*ks)}, v2, s[24:27], s46 offen offset:{(ks%4)*1024}{SL}'); vm.issue(('x',ks))
        return f
    def stl(i,r):
        def f():
            e(f'buffer_load_dword v{r+i}, v3, s[24:27], s44 offen offset:{i*256}{SL}'); vm.issue('st')
        return f
    for ks in range(8): xl(ks)()
    e(f'''s_lshl_b32 s4, s20, 7
    s_add_u32 s4, s4, {RS}
    v_and_b32 v12, 31, v0
    v_lshl_add_u32 v14, v12, 2, s4
    v_bfe_u32 v13, v0, 5, 1
    v_lshl_add_u32 v15, v13, 4, s4
    v_add_u32 v4, 0xc000, v2''')
    def rd(ks,WB):
        b=WB+12*(ks%2); a,o=('v2',ks*3072) if ks<16 else ('v4',ks*3072-0xc000)
        for j in range(3): e(f'ds_read_b128 v[{b+4*j}:{b+4*j+3}], {a} offset:{o+j*1024}')
    e('s_waitcnt vmcnt(8)\ns_barrier')
    rd(0,WB)
    for ks in range(28):
        if ks==22:
            vm.wait('st')
            for o in stats_calc(SR): e(o)
            e(f'ds_write_b32 v14, v{SR}')
            for a in range(4): e(f'ds_read_b128 v[{224+4*a}:{227+4*a}], v15 offset:{32*a}')
        if ks+1<28: rd(ks+1,WB)
        vm.wait(('x',ks))
        if ks==0: e.rt(2)
        e(f's_waitcnt lgkmcnt({3 if ks+1<28 else 0})')
        b=WB+12*(ks%2)
        mf=[mfma(ACC,b,X+4*ks,ks==0),mfma(ACC+16,b+4,X+4*ks,ks==0),mfma(ACC+32,X+4*ks,b+8,ks==0)]
        fl=[xl(ks+8)] if ks+8<28 else []
        if 4<=ks<18: fl.append(stl(ks-4,SR))
        spread(e,mf,fl)
    e(f'''s_lshl_b32 s47, s57, 6
    s_add_u32 s47, s47, s10
    s_lshl_b32 s47, s47, 12
    s_add_u32 s47, s47, s58
    v_cmp_eq_u32 s[30:31], 28, v12
    v_mul_f32 v{SR+1}, 0x3e8b97f6, v{SR}
    v_mov_b32 v9, 0x3f803f80
    v_mov_b32 v10, 0x3f80
    v_mov_b32 v11, {FLAG}
    s_lshl_b32 s4, s20, 11
    s_add_u32 s4, s4, {QX}
    v_add_u32 v13, s4, v2
    ds_write_b32 v11, v1
    s_nop 2''')
    for j in (1,2,0):
        a=ACC+16*j; t=64+8*j
        for r in range(16): e(f'v_mul_f32 v{a+r}, v{[SR+1,SR,224+r][j]}, v{a+r}')
        for q in range(8): e(f'v_cvt_pk_bf16_f32 v{t+q}, v{a+2*q}, v{a+2*q+1}')
        if j==0:
            e(f'v_cndmask_b32 v{t+6}, v{t+6}, v1, s[28:29]\nv_cndmask_b32 v{t+7}, v{t+7}, v1, s[28:29]\ns_nop 1')
            e(mfma(96,72,64,True)); e(mfma(96,76,68,False))
        if j==1: e(f'v_cndmask_b32 v{t+6}, v{t+6}, v9, s[28:29]\nv_cndmask_b32 v{t+7}, v{t+7}, v10, s[28:29]')
        if j==2:
            for q in range(8): e(f'v_cndmask_b32 v{t+q}, v{t+q}, v9, s[30:31]')
        if j>0:
            o=(j-1)*2048
            e(f'buffer_store_dwordx4 {R(t)}, v2, s[24:27], s47 offen offset:{o}{SC}\nbuffer_store_dwordx4 {R(t+4)}, v2, s[24:27], s47 offen offset:{o+1024}{SC}')
        if j==2:
            e.rt(3)
            signal(e,0,'s57')
    e('s_nop 15')
    e('v_max3_f32 v16, v96, v97, v98')
    for r in range(3,15,2): e(f'v_max3_f32 v16, v16, v{96+r}, v{97+r}')
    e('''v_max_f32 v16, v16, v111
    v_mov_b32 v17, v16
    s_nop 1
    v_permlane32_swap_b32 v16, v17
    s_nop 1
    v_max_f32 v16, v16, v17
    v_cvt_pk_bf16_f32 v16, -v16, 0
    v_cndmask_b32 v70, v70, v16, s[28:29]
    ds_write_b128 v13, v[64:67]
    ds_write_b128 v13, v[68:71] offset:1024''')
    Q=12; O=44; S=(108,124); P=(140,148); RING=156; T=220
    e(f'''s_lshl_b32 s44, s57, 18
    s_add_u32 s44, s44, s58
    s_lshl_b32 s4, s20, 16
    s_add_u32 s44, s44, s4
    s_mov_b32 s52, 0
    s_lshl_b32 s50, s14, 15
    s_lshl_b32 s51, s15, 15
    s_lshl_b32 s4, s20, 13
    s_add_u32 s4, s4, {WO}
    s_add_u32 s50, s50, s4
    s_add_u32 s51, s51, s4
    s_mul_i32 s53, s11, 57344
    s_add_u32 s53, s53, {WGU}''')
    e('s_cmp_eq_u32 s56, 0\ns_cbranch_scc0 w1d')
    vwait('w1',f'v_and_b32 v12, 15, v0\nv_lshlrev_b32 v12, 8, v12\nv_mov_b32 v13, 16\ns_mov_b32 s4, {CNT+10*4096}')
    wait(e,0,'s57',16)
    e.rt(4)
    def qread():
        for j in range(4):
            e(f's_xor_b32 s4, s20, {j}\ns_lshl_b32 s4, s4, 11\ns_add_u32 s4, s4, {QX}\nv_add_u32 v4, s4, v2\nds_read_b128 {R(Q+8*j)}, v4\nds_read_b128 {R(Q+8*j+4)}, v4 offset:1024')
    vm=VM(e)
    def ring(kb,q): return RING+16*(kb%4)+4*q
    def kvl(kb,q):
        if q==0: e(f's_add_u32 s45, s44, {kb*4096}')
        e(f'buffer_load_dwordx4 {R(ring(kb,q))}, v2, s[24:27], s45 offen offset:{q*1024}{SL}'); vm.issue(kb)
    def pre(i):
        if i<16:
            ks,p=divmod(i,2)
            if i==8: e('s_add_u32 s50, s50, 4096\ns_add_u32 s51, s51, 4096')
            e(f'buffer_load_dwordx4 {R(256+192+8*ks+4*p)}, v2, s[24:27], s{50+p} offen offset:{(ks%4)*1024}{SW}')
        else:
            i-=16
            if i%4==0: e(f's_add_u32 s46, s53, {i*1024}')
            e(f'buffer_load_dwordx4 {R(256+4*i)}, v2, s[24:27], s46 offen offset:{(i%4)*1024}{SW}')
        vm.issue('p')
    for q in range(4): kvl(0,q)
    qread()
    e('attn_main:')
    for kb in range(1,3):
        for q in range(4): kvl(kb,q)
    def qk(t,h): e(mfma(S[t%2],ring(t//4,h),Q+8*(t%4)+4*h,h==0))
    def pv(t,h): e(mfma(O+16*(t%4),ring(t//4,2+h),P[t%2]+4*h,t<4 and h==0))
    def ex(t,a,b):
        for r in range(a,b): e(f'v_exp_f32 v{S[t%2]+r}, v{S[t%2]+r}')
    def cv(t,a,b):
        for q in range(a,b): e(f'v_cvt_pk_bf16_f32 v{P[t%2]+q}, v{S[t%2]+2*q}, v{S[t%2]+2*q+1}')
    e('s_waitcnt lgkmcnt(0)'); vm.wait(0); e.rt(5); qk(0,0); qk(0,1); e('s_nop 10')
    NT=64
    for t in range(NT):
        if t+1<NT:
            if (t+1)%4==0: vm.wait((t+1)//4)
            qk(t+1,0)
        ex(t,0,4)
        if t+1<NT: qk(t+1,1)
        ex(t,4,8); cv(t,0,2)
        if t>0: pv(t-1,1)
        if t//4+3<16: kvl(t//4+3,t%4)
        ex(t,8,12); cv(t,2,4); ex(t,12,14)
        pv(t,0)
        pre(t)
        ex(t,14,16); cv(t,4,8)
    e('s_nop 1'); pv(NT-1,1)
    e.rt(6)
    e(f'''s_sub_u32 s50, s50, 4096
    s_sub_u32 s51, s51, 4096
    s_lshl_b32 s4, s10, 5
    s_lshl_b32 s5, s57, 1
    s_add_u32 s4, s4, s5
    s_lshl_b32 s4, s4, 10
    s_add_u32 s47, s4, s60
    s_nop 7''')
    reduce4(e,O,RING); reduce4b(e,O,RING)
    e(f'''v_mov_b32 v{T}, v{O+12}
    v_mov_b32 v{T+1}, v{O+12}
    s_mov_b32 s5, {'0.5' if FORCE_FALLBACK else '0x4e800000'}
    s_nop 0
    v_permlane32_swap_b32 v{T}, v{T+1}
    s_nop 1
    v_rcp_f32 v{T}, v{T+1}
    v_cmp_nle_f32 vcc, 0x30800000, v{T+1}
    v_cmp_nge_f32 s[30:31], s5, v{T+1}''')
    for r in range(16): e(f'v_mul_f32 v{O+r}, v{O+r}, v{T}')
    for q in range(8): e(f'v_cvt_pk_bf16_f32 v{S[0]+q}, v{O+2*q}, v{O+2*q+1}')
    e(f'''buffer_store_dwordx4 {R(S[0])}, v2, s[24:27], s47 offen{SC}
    buffer_store_dwordx4 {R(S[0]+4)}, v2, s[24:27], s47 offen offset:1024{SC}
    s_or_b64 vcc, vcc, s[30:31]
    s_cbranch_vccz attn_ok
    v_mov_b32 v4, 1
    ds_write_b32 v11, v4
    attn_ok:''')
    e.rt(7)
    def chk():
        e('''ds_read_b32 v4, v11
        s_waitcnt lgkmcnt(0)
        v_readfirstlane_b32 s4, v4
        s_cmp_gt_u32 s4, s52
        s_cbranch_scc1 attn_fb''')
    signal(e,1,'s21',chk)
    e('s_cmp_eq_u32 s22, 7\ns_cbranch_scc1 idle')
    e(f'''s_lshl_b32 s44, s12, 15
    s_lshl_b32 s45, s13, 15
    s_lshl_b32 s4, s20, 13
    s_add_u32 s4, s4, s60
    s_add_u32 s44, s44, s4
    s_add_u32 s45, s45, s4''')
    wait(e,1,'s21',16)
    e.rt(8)
    vm=VM(e)
    for ks in range(8):
        if ks==4: e('s_add_u32 s44, s44, 4096\ns_add_u32 s45, s45, 4096')
        for p in range(2):
            e(f'buffer_load_dwordx4 {R(128+8*ks+4*p)}, v2, s[24:27], s{44+p} offen offset:{(ks%4)*1024}{SL}'); vm.issue(ks)
    for ks in range(8):
        vm.wait(ks)
        for p in range(4): e(mfma(16+16*p,256+192+8*ks+4*(p>>1),128+8*ks+4*(p&1),ks==0))
    e('s_nop 7\ns_nop 3')
    for i in range(48,56):
        if i%4==0: e(f's_add_u32 s46, s53, {i*1024}')
        e(f'buffer_load_dwordx4 {R(256+4*i)}, v2, s[24:27], s46 offen offset:{(i%4)*1024}{SW}')
    reduce4(e,16,80)
    e(f's_mul_i32 s54, s56, {XF[2]}\ns_add_u32 s54, s54, {XF[1]}\ns_mul_i32 s55, s56, {ST[2]-ST[0]}\ns_add_u32 s55, s55, {ST[1]}')
    resid_epi(e,0,0); resid_store(e,'s54','s55')
    e.rt(9)
    signal(e,2,'s21')
    XB=16; ACC=64; SR=40; PK=192
    e(f'''s_mul_i32 s41, s21, 114688
    s_add_u32 s41, s41, s54
    s_mul_i32 s38, s20, 14336
    s_add_u32 s51, s38, 57344
    s_add_u32 s50, s51, s41
    s_and_b32 s40, s20, 1
    s_mul_i32 s40, s40, 28672
    s_lshr_b32 s4, s20, 1
    s_lshl_b32 s4, s4, 11
    s_add_u32 s40, s40, s4
    s_add_u32 s41, s41, s40
    s_lshl_b32 s48, s20, 13
    s_add_u32 s48, s48, 114688
    v_add_u32 v10, s48, v2
    s_lshl_b32 s39, s21, 8
    s_add_u32 s39, s39, s59
    s_add_u32 s39, s39, {3*4096}
    s_lshl_b32 s44, s10, 12
    s_add_u32 s44, s44, s55
    s_lshl_b32 s4, s20, 7
    v_and_b32 v12, 31, v0
    v_lshlrev_b32 v13, 2, v12
    v_add_u32 v13, {RS2}, v13
    v_add_u32 v14, s4, v13
    v_add_u32 v15, 57344, v2
    v_add_u32 v9, s38, v2
    s_mul_i32 s4, s21, {4*112*1024}
    s_lshl_b32 s5, s11, 11
    s_add_u32 s4, s4, s5
    s_add_u32 s32, s4, s61
    s_add_u32 s33, s32, {112*1024}
    s_add_u32 s34, s33, {112*1024}
    s_add_u32 s35, s34, {112*1024}
    s_mul_i32 s36, s14, 114688
    s_mul_i32 s37, s15, 114688
    s_mul_i32 s4, s20, 28672
    s_add_u32 s4, s4, {WD}
    s_add_u32 s36, s36, s4
    s_add_u32 s37, s37, s4''')
    wait(e,2,'s21',14)
    e.rt(10)
    vm=VM(e); lg=VM(e,'lgkmcnt',15)
    def wreg(ks,u): return 256+8*ks+4*u
    def dl(st,q):
        def f():
            if q==0: e(f's_add_u32 m0, s40, {st*4096}\ns_add_u32 s45, s41, {st*4096}')
            e(f'buffer_load_dwordx4 v2, s[24:27], s45 offen offset:{q*1024}{SL} lds'); vm.issue(('d',st))
        return f
    def d23(q):
        def f():
            if q%4==0: e(f's_add_u32 m0, s51, {q*1024}\ns_add_u32 s46, s50, {q*1024}')
            e(f'buffer_load_dwordx4 v2, s[24:27], s46 offen offset:{(q%4)*1024}{SL} lds'); vm.issue('x23')
        return f
    def wdreg(ks,p):
        if ks<4: return 256+224+8*ks+4*p
        if ks<12: return 64+8*(ks-4)+4*p
        i=2*(ks-12)+p
        return wreg(i,0) if i<28 else wreg(i-28,1)
    def wd(ks,p):
        def f():
            if ks%4==0: e(f's_add_u32 s{46+p}, s{36+p}, {ks*1024}')
            e(f'buffer_load_dwordx4 {R(wdreg(ks,p))}, v2, s[24:27], s{46+p} offen offset:{(ks%4)*1024}{SW}'); vm.issue('wd')
        return f
    def stg(ks,p): return ('s48','v10',p*4096,17) if ks<21 else ('s38','v9',p*7168,21)
    def wdl(ks,p):
        sb,vb,o,k0=stg(ks,p)
        def f():
            if (ks-k0)%4==0: e(f's_add_u32 m0, {sb}, {o+(ks-k0)*1024}\ns_add_u32 s45, s{36+p}, {ks*1024}')
            e(f'buffer_load_dwordx4 v2, s[24:27], s45 offen offset:{(ks-k0)%4*1024}{SW} lds'); vm.issue('wdl')
        return f
    def wdr(ks,p):
        sb,vb,o,k0=stg(ks,p)
        def f():
            e(f'ds_read_b128 {R(wdreg(ks,p))}, {vb} offset:{o+(ks-k0)*1024}'); lg.issue('w')
        return f
    AH=3
    for st in range(AH):
        for q in range(2): dl(st,q)()
    def rda(ks):
        for j in range(2): e(f'ds_read_b128 {R(XB+8*(ks%2)+4*j)}, v2 offset:{ks*1024+j*28672}')
    def rdx(i):
        o=i*1024 if i<56 else (i-28)*1024
        e(f'ds_read_b128 {R(224+4*(i%4))}, v15 offset:{o}'); lg.issue(i)
    vm.wait(('d',0)); e('s_barrier'); e.rt(11); rda(0)
    fills=[[stl(i,SR) for i in range(7)],[stl(i,SR) for i in range(7,14)],[d23(q) for q in range(8)],[d23(q) for q in range(8,14)],
           [wd(q//2,q%2) for q in range(8)],[wdl(17+q%4,q//4) for q in range(8)],[]]
    for st in range(7):
        fill=([dl(st+AH,q) for q in range(2)] if st+AH<7 else [])+fills[st]
        for k in range(4):
            ks=4*st+k
            if ks==17:
                vm.wait('st')
                for o in stats_calc(SR): e(o)
                e(f'ds_write_b32 v14, v{SR}')
            if ks==21:
                for j in range(4): e(f'ds_read_b32 v{244+j}, v13 offset:{128*j}')
            if ks+1<28:
                if k==3: vm.wait(('d',st+1)); e('s_waitcnt lgkmcnt(0)\ns_barrier') if ks==19 else e('s_barrier')
                rda(ks+1)
            e(f's_waitcnt lgkmcnt({2 if ks+1<28 else 0})')
            if ks==27:
                vm.wait('x23'); e('s_barrier')
                for q in range(2): rdx(q)
            b=XB+8*(ks%2)
            mf=[mfma(ACC+32*j+16*u,wreg(ks,u),b+4*j,ks==0) for j in range(2) for u in range(2)]
            fl=fill[len(fill)*k//4:len(fill)*(k+1)//4]
            if ks==22: fl=fl+[f'v_rcp_f32 v{240+j}, v{244+j}\nv_mul_f32 v{244+j}, 0xbfb8aa3b, v{244+j}' for j in range(4)]
            spread(e,mf,fl)
    def epi(j,part=3,tag='s'):
        G=ACC+32*j; U=G+16; t=PK+8*j; o=[]
        def st(h):
            def f():
                e(f'buffer_store_dwordx4 v[{t+h//2}:{t+h//2+3}], v2, s[24:27], s{32+j} offen offset:{h*128}{SC}'); vm.issue(tag)
            return f
        for h in (0,8):
            rr=range(h,h+8)
            if part&1:
                o+=[f'v_mul_f32 v{G+r}, v{244+j}, v{G+r}' for r in rr]
                o+=[f'v_exp_f32 v{G+r}, v{G+r}' for r in rr]
                o+=[f'v_fma_f32 v{G+r}, v{G+r}, v{240+j}, v{240+j}' for r in rr]
                o+=[f'v_rcp_f32 v{G+r}, v{G+r}' for r in rr]
            if part&2:
                o+=[f'v_mul_f32 v{U+r}, v{U+r}, v{G+r}' for r in rr]
                o+=[f'v_cvt_pk_bf16_f32 v{t+r//2}, v{U+r}, v{U+r+1}' for r in range(h,h+8,2)]
                o+=[st(h)]
        return o
    def merge(a,b):
        o=[]; k=0
        for i,x in enumerate(a):
            o.append(x)
            while k<len(b)*(i+1)//len(a): o.append(b[k]); k+=1
        return o
    def run(x): x() if callable(x) else e(x)
    if GUST: e.rt(2)
    ops=merge(epi(0,3,'sA'),[wdl(21+q%7,q//7) for q in range(14)])+merge(epi(1,3,'sA'),[wd(4+q//2,q%2) for q in range(8)]); n=len(ops)
    for ks in range(28):
        if ks%2==0: rdx(ks+2); rdx(ks+3); lg.wait(ks+1)
        mf=[mfma(ACC+64+16*u,wreg(ks,u),224+4*(ks%4),ks==0) for u in range(2)]
        fl=ops[n*ks//28:n*(ks+1)//28]
        if ks==0: e(mf[0]); e(mf[1]); e('s_nop 7'); [run(x) for x in fl]
        else: spread(e,mf,fl)
    if GUST: e.rt(5)
    DRED=65536; D=12; PRE=10; DA=128
    def hl(i):
        def f():
            if i%4==0: e(f's_add_u32 s45, s44, {i*1024 if i<28 else 2*114688+(i-28)*1024}')
            e(f'buffer_load_dwordx4 {R(16+4*(i%D))}, v2, s[24:27], s45 offen offset:{(i%4)*1024}{SL}'); vm.issue(i)
        return f
    def poll(off,reg,lab):
        e(f'''s_mov_b32 s5, 0x8000
        s_branch {lab}c
        {lab}:
        buffer_load_dword v{reg}, v1, s[24:27], s39 offen offset:{off} sc1
        s_waitcnt vmcnt(0)
        {lab}c:
        v_readfirstlane_b32 s6, v{reg}
        s_sub_u32 s5, s5, 1
        s_cbranch_scc1 {lab}d
        s_cmp_lt_u32 s6, 14
        s_cbranch_scc1 {lab}
        {lab}d:''')
    e(f'''s_lshl_b32 s44, s21, 2
    s_add_u32 s44, s44, s23
    s_mul_i32 s44, s44, 114688
    s_mul_i32 s4, s20, 28672
    s_add_u32 s4, s4, s61
    s_add_u32 s44, s44, s4''')
    o1=epi(2,3,'sB'); o2=epi(3,1); lds=[wd(8+q//2,q%2) for q in range(18)]
    rds=[wdr(17+q//2,q%2) for q in range(22)]
    for i in range(56):
        if i%2==0:
            if i+30<84: rdx(i+30); rdx(i+31)
            lg.wait(29+i)
        e(mfma(ACC+96+16*(i//28),wreg(i%28,i//28),224+4*(i%4),i%28==0))
        if i==0: e('s_nop 7')
        fl=o1[len(o1)*i//33:len(o1)*(i+1)//33] if i<33 else o2[len(o2)*(i-33)//23:len(o2)*(i-32)//23]
        if i<PA: fl=fl+lds[18*i//PA:18*(i+1)//PA]
        if GUST and i==28: e.rt(4)
        if i==SIGA: vm.wait('sA'); signal(e,3,'s21',off=128,drain=False)
        if 24<=i<46: fl=fl+[rds[i-24]]
        if i==PL: e('buffer_load_dword v13, v1, s[24:27], s39 offen offset:128 sc1'); vm.issue('poll')
        for x in fl: run(x)
    fin=[f'''s_lshr_b32 s4, s20, 1
    s_lshl_b32 s4, s4, 15
    s_lshl_b32 s5, s20, 12
    s_add_u32 s5, s5, {DRED}
    s_add_u32 s6, s4, s5
    v_add_u32 v9, s6, v2
    s_xor_b32 s4, s4, 32768
    s_add_u32 s6, s4, s5
    v_add_u32 v10, s6, v2
    s_lshl_b32 s4, s20, 14
    s_add_u32 s4, s4, {DRED}
    v_add_u32 v12, s4, v2''']+['s_nop 7']
    e('s_waitcnt lgkmcnt(0)')
    for o in fin+epi(3,2,'sB'): run(o)
    e.rt(12)
    vm.wait('poll'); poll(128,13,'pollA')
    for i in range(PRE): hl(i)()
    vm.wait('sB'); signal(e,3,'s21',drain=False)
    e.rt(13)
    def dw(t,nr,q): return f'ds_write_b128 v{9+nr}, {R(DA+32*t+16*nr+4*q)} offset:{t*16384+q*1024}'
    for i in range(56):
        if GUST and i==28: e.rt(3)
        if i==28-PRE-4: e('buffer_load_dword v13, v1, s[24:27], s39 offen sc1'); vm.issue('poll')
        if i+PRE==28: vm.wait('poll'); poll(0,13,'pollB')
        vm.wait(i)
        mf=[mfma(DA+32*(i//28)+16*p,wdreg(i%28,p),16+4*(i%D),i%28==0) for p in range(2)]
        fl=[hl(i+PRE)] if i+PRE<56 else []
        if 32<=i<48 and i%2==0: fl.append(dw(0,(i-32)//8,(i-32)//2%4))
        spread(e,mf,fl)
    e.rt(14)
    for q in range(8): e(f'v_lshlrev_b32 v{16+2*q}, 16, v{XR+q}\nv_and_b32 v{17+2*q}, 0xffff0000, v{XR+q}')
    for nr in range(2):
        for q in range(4): e(dw(1,nr,q))
    e('s_waitcnt lgkmcnt(0)\ns_barrier')
    for p in range(4):
        for q in range(4): e(f'ds_read_b128 {R(64+16*p+4*q)}, v12 offset:{p*4096+q*1024}')
    for p in range(4):
        e(f's_waitcnt lgkmcnt({12-4*p})')
        for r in range(16): e(f'v_add_f32 v{16+r}, v{16+r}, v{64+16*p+r}')
    for q in range(8): e(f'v_cvt_pk_bf16_f32 v{XR+q}, v{16+2*q}, v{17+2*q}')
    e('s_cmp_eq_u32 s56, 1\ns_cbranch_scc1 final')
    resid_store(e,XF[2],ST[2])
    e.rt(15)
    signal(e,4,'s21')
    qkv_wpre(e,0,21)
    e('next:')
    e.rtflush()
    e(f's_mov_b32 s56, 1\ns_add_u32 s59, s59, 20480\ns_mov_b32 s58, {KV1}\ns_mov_b32 s60, {OF1}\ns_mov_b32 s61, {HF1}')
    wait(e,4,'s21',14,back=20480,drain=False)
    e('s_branch layer\nidle:\ns_cmp_eq_u32 s56, 0\ns_cbranch_scc1 next')
    e.rtflush(); e('s_endpgm\nfinal:')
    e.srd(32,16,1835008)
    e(f'''v_and_b32 v9, 31, v0
    v_bfe_u32 v4, v0, 5, 1
    v_mul_u32_u24 v9, 896, v9
    v_lshl_add_u32 v9, v4, 4, v9
    s_mul_i32 s4, s12, 28672
    s_lshl_b32 s5, s14, 6
    s_add_u32 s4, s4, s5
    v_permlane32_swap_b32 v{XR}, v{XR+2}
    v_permlane32_swap_b32 v{XR+1}, v{XR+3}
    v_permlane32_swap_b32 v{XR+4}, v{XR+6}
    v_permlane32_swap_b32 v{XR+5}, v{XR+7}
    s_nop 1
    buffer_store_dwordx4 {R(XR)}, v9, s[32:35], s4 offen
    buffer_store_dwordx4 {R(XR+4)}, v9, s[32:35], s4 offen offset:32''')
    if PROF[0]: e('s_waitcnt vmcnt(0)')
    e.rt(15); e.rtflush(); e('s_endpgm')
    e('attn_fb:\ns_mov_b32 s52, 1\ns_mov_b32 s45, s44\ns_mov_b32 s4, 16')
    for j in range(4): e(f'v_mov_b32 v{T+j}, 0xff800000\nv_cndmask_b32 v{Q+8*j+6}, v{Q+8*j+6}, v1, s[28:29]')
    e(f'''attn_fbl:
    buffer_load_dwordx4 {R(RING)}, v2, s[24:27], s45 offen{SL}
    buffer_load_dwordx4 {R(RING+4)}, v2, s[24:27], s45 offen offset:1024{SL}
    s_add_u32 s45, s45, 4096
    s_waitcnt vmcnt(0)''')
    for j in range(4): e(mfma(O+16*j,RING,Q+8*j,True)); e(mfma(O+16*j,RING+4,Q+8*j+4,False))
    e('s_nop 15')
    for j in range(4):
        for r in range(0,16,2): e(f'v_max3_f32 v{T+j}, v{T+j}, v{O+16*j+r}, v{O+16*j+r+1}')
    e('s_sub_u32 s4, s4, 1\ns_cmp_lg_u32 s4, 0\ns_cbranch_scc1 attn_fbl\nv_and_b32 v4, 31, v0\nv_lshlrev_b32 v4, 2, v4')
    for j in range(4):
        e(f'''v_mov_b32 v{T+4}, v{T+j}
        s_xor_b32 s4, s20, {j}
        s_lshl_b32 s4, s4, 9
        v_permlane32_swap_b32 v{T+j}, v{T+4}
        s_add_u32 s4, s4, {MX}
        v_add_u32 v{T+8+j}, s4, v4
        s_lshl_b32 s5, s20, 7
        v_max_f32 v{T+j}, v{T+j}, v{T+4}
        v_add_u32 v{T+5}, s5, v{T+8+j}
        ds_write_b32 v{T+5}, v{T+j}''')
    e('s_waitcnt lgkmcnt(0)\ns_barrier')
    for j in range(4):
        for k in range(4): e(f'ds_read_b32 v{O+4*j+k}, v{T+8+j} offset:{k*128}')
    e('s_waitcnt lgkmcnt(0)')
    for j in range(4):
        b=O+4*j
        e(f'''v_max3_f32 v{b}, v{b}, v{b+1}, v{b+2}
        v_max_f32 v{b}, v{b}, v{b+3}
        v_cvt_pk_bf16_f32 v{b+1}, -v{b}, 0
        v_lshlrev_b32 v{b+2}, 16, v{b+1}
        v_sub_f32 v{b}, -v{b}, v{b+2}
        v_cvt_pk_bf16_f32 v{b+2}, v{b}, 0
        v_lshlrev_b32 v{b+2}, 16, v{b+2}
        v_sub_f32 v{b}, v{b}, v{b+2}
        v_or_b32 v{b+1}, v{b+1}, v{b+2}
        v_cvt_pk_bf16_f32 v{b}, v{b}, 0
        v_cndmask_b32 v{Q+8*j+6}, v{Q+8*j+6}, v{b+1}, s[28:29]
        v_cndmask_b32 v{Q+8*j+7}, v{Q+8*j+7}, v{b}, s[28:29]''')
    e('s_mov_b32 s45, s44')
    for q in range(4): e(f'buffer_load_dwordx4 {R(RING+4*q)}, v2, s[24:27], s45 offen offset:{q*1024}{SL}')
    e('s_branch attn_main\nmega_end:\ns_endpgm')
    e.kd('mega_kernel',512,256)
    e.launch.append(f'; @launch kernel=mega_kernel grid=(256,1,1) block=(256,1,1) lds={LDS}')
```

```python
from common import *
def gen(e):
    e('''s_load_dwordx4 s[4:7], s[0:1], 0
    s_load_dwordx2 s[8:9], s[0:1], 16
    s_load_dwordx4 s[12:15], s[0:1], 32
    s_load_dwordx2 s[16:17], s[0:1], 48
    s_load_dwordx2 s[18:19], s[0:1], 72
    s_load_dwordx2 s[10:11], s[0:1], 64
    s_cmp_ge_u32 s2, 256
    s_cbranch_scc1 mega_end
    s_and_b32 s41, s2, 7
    s_lshr_b32 s42, s2, 3
    s_lshr_b32 s21, s41, 1
    s_lshl_b32 s21, s21, 2
    s_lshr_b32 s43, s42, 3
    s_add_u32 s21, s21, s43
    s_and_b32 s23, s41, 1
    s_and_b32 s22, s42, 7
    s_lshl_b32 s57, s23, 3
    s_add_u32 s57, s57, s22
    v_lshrrev_b32 v1, 6, v0
    v_and_b32 v2, 31, v0
    v_readfirstlane_b32 s20, v1
    v_bfe_u32 v3, v0, 5, 1
    v_and_b32 v4, 63, v0
    v_lshlrev_b32 v4, 4, v4
    s_waitcnt lgkmcnt(0)''')
    e.srd(24,18,WS_BYTES)
    e.srd(52,10,256); e.srd(28,4,1835008)
    e(f'''s_cmp_eq_u32 s2, 255
    s_cbranch_scc0 prep_nz
    v_mov_b32 v8, 0
    v_mov_b32 v9, 0
    v_mov_b32 v10, 0
    v_mov_b32 v11, 0
    v_lshlrev_b32 v12, 4, v0
    s_mov_b32 s41, {CNT}''')
    for i in range(12): e('buffer_store_dwordx4 v[8:11], v12, s[24:27], s41 offen sc1\ns_add_u32 s41, s41, 4096')
    e('''s_waitcnt vmcnt(0)
    s_barrier
    v_mov_b32 v9, 1
    buffer_store_dword v9, v8, s[52:55], 0 offen sc1
    prep_nz:''')
    e(f'''s_lshr_b32 s41, s57, 2
    s_lshl_b32 s42, s21, 2
    s_add_u32 s41, s41, s42
    s_and_b32 s42, s57, 3
    s_lshl_b32 s42, s42, 2
    s_add_u32 s58, s42, s20
    s_mul_i32 s59, s41, 28672
    s_lshl_b32 s43, s58, 6
    s_add_u32 s42, s59, s43
    s_lshl_b32 s43, s58, 11
    s_add_u32 s59, s59, s43
    s_lshl_b32 s60, s41, 12
    s_lshl_b32 s43, s58, 8
    s_add_u32 s60, s60, s43
    s_add_u32 s60, s60, {ST[0]}
    v_mul_u32_u24 v5, 896, v2
    v_lshl_add_u32 v5, v3, 3, v5
    s_cmp_ge_u32 s58, 14
    s_cbranch_scc1 prep_nx''')
    for k in range(2):
        e(f'buffer_load_dwordx2 v[{144+4*k}:{145+4*k}], v5, s[28:31], s42 offen offset:{32*k}\nbuffer_load_dwordx2 v[{146+4*k}:{147+4*k}], v5, s[28:31], s42 offen offset:{32*k+16}')
    e('prep_nx:\ns_cmp_ge_u32 s2, 230\ns_cbranch_scc1 prep_fin')
    e(f'''s_mov_b32 s31, 0x20000
    s_mov_b32 s37, 1
    s_mov_b32 s38, 7
    s_mov_b32 s39, 32
    s_mov_b32 s40, 0
    s_mov_b32 s36, 1024
    s_mul_i32 s34, s20, 7
    s_cmp_ge_u32 s2, 48
    s_cbranch_scc1 prep_t1
    s_mov_b32 s28, s6
    s_and_b32 s29, s7, 0xffff
    s_mov_b32 s30, 1204224
    s_mov_b32 s32, 2688
    s_mul_i32 s33, s2, 56
    s_mov_b32 s39, 28
    s_mov_b32 s36, 3072
    s_and_b32 s41, s2, 15
    s_lshr_b32 s42, s2, 4
    s_mul_i32 s35, s41, 28
    s_add_u32 s35, s35, s34
    s_mul_i32 s35, s35, 3
    s_add_u32 s35, s35, s42
    s_lshl_b32 s35, s35, 10
    s_add_u32 s35, s35, {WQKV}
    s_branch prep_go
    prep_t1:
    s_cmp_ge_u32 s2, 160
    s_cbranch_scc1 prep_t2
    s_sub_u32 s41, s2, 48
    s_and_b32 s42, s41, 1
    s_lshr_b32 s41, s41, 1
    s_cmp_eq_u32 s42, 0
    s_cselect_b32 s28, s12, s14
    s_cselect_b32 s29, s13, s15
    s_and_b32 s29, s29, 0xffff
    s_mov_b32 s30, 1605632
    s_mov_b32 s32, 3584
    s_lshl_b32 s33, s41, 6
    s_mov_b32 s36, 2048
    s_mul_i32 s35, s41, 28
    s_add_u32 s35, s35, s34
    s_lshl_b32 s35, s35, 1
    s_add_u32 s35, s35, s42
    s_lshl_b32 s35, s35, 10
    s_add_u32 s35, s35, {WGU}
    s_branch prep_go
    prep_t2:
    s_mov_b32 s37, 0
    s_mov_b32 s32, 896
    s_cmp_ge_u32 s2, 174
    s_cbranch_scc1 prep_t3
    s_sub_u32 s41, s2, 160
    s_mov_b32 s28, s8
    s_and_b32 s29, s9, 0xffff
    s_mov_b32 s30, 401408
    s_lshl_b32 s33, s41, 6
    s_mov_b32 s38, 8
    s_mov_b32 s40, 1
    s_lshl_b32 s34, s20, 3
    s_lshl_b32 s35, s41, 5
    s_add_u32 s35, s35, s34
    s_lshl_b32 s35, s35, 10
    s_add_u32 s35, s35, {WO}
    s_branch prep_go
    prep_t3:
    s_sub_u32 s41, s2, 174
    s_and_b32 s42, s41, 3
    s_lshr_b32 s41, s41, 2
    s_mov_b32 s28, s16
    s_and_b32 s29, s17, 0xffff
    s_mov_b32 s30, 1605632
    s_lshl_b32 s33, s41, 6
    s_mul_i32 s42, s42, 28
    s_add_u32 s34, s34, s42
    s_mul_i32 s35, s41, 112
    s_add_u32 s35, s35, s34
    s_lshl_b32 s35, s35, 10
    s_add_u32 s35, s35, {WD}
    prep_go:''')
    e('''v_bfe_u32 v5, v0, 2, 4
    v_mul_lo_u32 v5, v5, s32
    v_and_b32 v6, 3, v0
    v_lshl_add_u32 v5, v6, 4, v5
    v_add_u32 v5, s33, v5
    s_lshl_b32 s47, s20, 13
    v_add_u32 v7, s47, v4''')
    for k in range(8):
        if k==7: e('s_cmp_lt_u32 s38, 8\ns_cbranch_scc1 prep_ld_done')
        e(f's_add_u32 s41, s34, {k}\ns_lshl_b32 s42, s41, 4\ns_lshr_b32 s43, s41, 1\ns_lshl_b32 s43, s43, 2\ns_mul_i32 s43, s43, s40\ns_sub_u32 s42, s42, s43\ns_mul_i32 s42, s42, s32')
        e(f'buffer_load_dwordx4 {R(80+4*k)}, v5, s[28:31], s42 offen')
    e('prep_ld_done:')
    e('''v_bfe_u32 v8, v0, 2, 2
    v_lshl_add_u32 v8, v3, 2, v8
    v_lshlrev_b32 v8, 6, v8
    v_bfe_u32 v9, v0, 4, 1
    v_lshl_add_u32 v8, v9, 5, v8
    v_lshl_add_u32 v8, v6, 3, v8
    v_add_u32 v8, s47, v8
    v_cmp_gt_u32 s[48:49], s39, v2
    v_cmp_ne_u32 vcc, 0, v3
    s_cmp_eq_u32 s40, 1
    s_cselect_b64 s[44:45], vcc, 0
    v_mov_b32 v9, 0
    s_waitcnt vmcnt(0)''')
    for k in range(8): e(f'ds_write_b128 v7, {R(80+4*k)} offset:{k*1024}')
    for k in range(8):
        e(f'ds_read_b64_tr_b16 v[{112+4*k}:{113+4*k}], v8 offset:{k*1024}\nds_read_b64_tr_b16 v[{114+4*k}:{115+4*k}], v8 offset:{k*1024+512}')
    e('s_waitcnt lgkmcnt(0)')
    for k in range(1,8,2): e(f'v_cndmask_b32 v{114+4*k}, v{114+4*k}, v9, s[44:45]\nv_cndmask_b32 v{115+4*k}, v{115+4*k}, v9, s[44:45]')
    e('s_cmp_eq_u32 s37, 0\ns_cbranch_scc1 prep_nocenter')
    for r in range(28): e(f'v_cndmask_b32 v{112+r}, v9, v{112+r}, s[48:49]')
    for r in range(28): e(f'v_lshlrev_b32 v{16+2*r}, 16, v{112+r}\nv_and_b32 v{17+2*r}, 0xffff0000, v{112+r}')
    for c in range(4): e(f'v_add_f32 v{10+c}, v{16+c}, v{20+c}')
    for r in range(24,72): e(f'v_add_f32 v{10+r%4}, v{10+r%4}, v{r}')
    e('''v_add_f32 v10, v10, v11
    v_add_f32 v12, v12, v13
    v_add_f32 v10, v10, v12
    v_lshlrev_b32 v11, 2, v0
    ds_write_b32 v11, v10 offset:32768
    s_waitcnt lgkmcnt(0)
    s_barrier
    v_lshlrev_b32 v11, 2, v2''')
    for i in range(8): e(f'ds_read_b32 v{80+i}, v11 offset:{32768+i*128}')
    e('s_waitcnt lgkmcnt(0)')
    for i in range(1,8): e(f'v_add_f32 v80, v80, v{80+i}')
    e('v_mul_f32 v80, 0x3b124925, v80')
    for r in range(16,72): e(f'v_sub_f32 v{r}, v{r}, v80')
    for p in range(4):
        for k in range(7):
            a=16+8*k+2*p
            if p>0: e(f'v_add_f32 v{a}, v{a}, v{88+k}')
        for k in range(7): e(f'v_cvt_pk_bf16_f32 v{112+4*k+p}, v{16+8*k+2*p}, v{16+8*k+2*p}')
        for k in range(7): e(f'v_and_b32 v{96+k}, 0xffff0000, v{112+4*k+p}')
        for k in range(7): e(f'v_sub_f32 v{96+k}, v{16+8*k+2*p}, v{96+k}')
        for k in range(7): e(f'v_add_f32 v{17+8*k+2*p}, v{17+8*k+2*p}, v{96+k}')
        for k in range(7): e(f'v_cvt_pk_bf16_f32 v{112+4*k+p}, v{16+8*k+2*p}, v{17+8*k+2*p}')
        if p<3:
            for k in range(7): e(f'v_and_b32 v{88+k}, 0xffff0000, v{112+4*k+p}')
            for k in range(7): e(f'v_sub_f32 v{88+k}, v{17+8*k+2*p}, v{88+k}')
    e('prep_nocenter:')
    for k in range(8):
        if k==7: e('s_cmp_lt_u32 s38, 8\ns_cbranch_scc1 prep_fin')
        e(f'buffer_store_dwordx4 {R(112+4*k)}, v4, s[24:27], s35 offen sc1\ns_add_u32 s35, s35, s36')
    e('prep_fin:')
    e('''s_cmp_ge_u32 s58, 14
    s_cbranch_scc1 prep_nx2
    s_mov_b32 s44, 0x3f803f80
    v_mov_b32 v8, 0
    v_mov_b32 v9, 0
    v_lshrrev_b32 v6, 2, v4''')
    e('s_cmp_ge_u32 s2, 230\ns_cbranch_scc0 prep_xok\ns_waitcnt vmcnt(0)\nprep_xok:')
    for k in range(2):
        e(f'buffer_store_dwordx4 v[{144+4*k}:{147+4*k}], v4, s[24:27], s59 offen offset:{1024*k} sc1')
        for q in range(4): e(f'v_dot2_f32_bf16 v8, v{144+4*k+q}, s44, v8\nv_dot2_f32_bf16 v9, v{144+4*k+q}, v{144+4*k+q}, v9')
    e(f'''s_nop 4
    v_permlane32_swap_b32 v8, v9
    s_nop 1
    v_add_f32 v8, v8, v9
    buffer_store_dword v8, v6, s[24:27], s60 offen sc1
    prep_nx2:
    v_mov_b32 v1, 0
    s_mov_b32 s5, 0x8000
    prep_fl:
    buffer_load_dword v8, v1, s[52:55], 0 offen sc1
    s_waitcnt vmcnt(0)
    v_readfirstlane_b32 s6, v8
    s_sub_u32 s5, s5, 1
    s_cbranch_scc1 prep_fld
    s_cmp_eq_u32 s6, 0
    s_cbranch_scc1 prep_fl
    prep_fld:
    s_barrier
    s_cmp_eq_u32 s20, 0
    s_cbranch_scc0 prep_done
    s_lshl_b32 s4, s21, 8
    s_add_u32 s4, s4, {CNT+10*4096}
    s_and_b32 s5, s2, 15
    s_lshl_b32 s5, s5, 8
    s_add_u32 s5, s5, {CNT+11*4096}
    s_mov_b64 exec, 1
    v_mov_b32 v8, 1
    buffer_atomic_add v8, v1, s[24:27], s4 offen sc1
    s_cmp_lt_u32 s2, 48
    s_cbranch_scc0 prep_d2
    buffer_atomic_add v8, v1, s[24:27], s5 offen sc1
    prep_d2:
    s_mov_b64 exec, -1
    prep_done:''')
```

```python
from common import *
import prep
SW=__import__('os').environ.get('SW',' sc1')
FORCE_FALLBACK=False
QX=86016; RS=94208; FLAG=95232; MX=95488; RED=98304; RS2=147456; X3=86016; LDS=148480
XR=248
SC=' sc1'
PT=int(__import__('os').environ.get('PT','14'))
NW=int(__import__('os').environ.get('NW','21'))
PA=int(__import__('os').environ.get('PA','44'))
PL=int(__import__('os').environ.get('PL','50'))
GUST=__import__('os').environ.get('GUST')
SL=__import__('os').environ.get('SL',' sc1')
SIGA=int(__import__('os').environ.get('SIGA','16'))
uid=[0]
def signal(e,ph,g,check=None,off=0,drain=True,extra=''):
    uid[0]+=1; u=uid[0]
    if drain: e('s_waitcnt vmcnt(0) lgkmcnt(0)')
    e('s_barrier')
    if check: check()
    e(f'''s_cmp_eq_u32 s20, 0
    s_cbranch_scc0 sig{u}
    s_lshl_b32 s4, {g}, 8
    s_add_u32 s4, s4, s59
    s_add_u32 s4, s4, {ph*4096+off}
    s_mov_b64 exec, 1
    v_mov_b32 v4, 1
    buffer_atomic_add v4, v1, s[24:27], s4 offen sc1
    {extra}
    s_mov_b64 exec, -1
    sig{u}:''')
def wait(e,ph,g,n,back=0,drain=False):
    uid[0]+=1; u=uid[0]
    e(f'''s_cmp_eq_u32 s20, 0
    s_cbranch_scc0 wt{u}d
    s_lshl_b32 s4, {g}, 8
    s_add_u32 s4, s4, s59
    s_add_u32 s4, s4, {ph*4096-back}
    s_mov_b32 s5, 0x8000
    wt{u}:
    buffer_load_dword v4, v1, s[24:27], s4 offen sc1
    s_sub_u32 s5, s5, 1
    s_cbranch_scc1 wt{u}d
    s_waitcnt vmcnt(0)
    v_readfirstlane_b32 s6, v4
    s_cmp_lt_u32 s6, {n}
    s_cbranch_scc1 wt{u}
    wt{u}d:''')
    if drain: e('s_waitcnt vmcnt(0)')
    e('s_waitcnt lgkmcnt(0)\ns_barrier')
def mfma(d,a,b,first): return f'v_mfma_f32_32x32x16_bf16 {R(d,16)}, {R(a)}, {R(b)}, {"0" if first else R(d,16)}'
def qkv_wpre(e,a,b):
    for i in range(a,b):
        st,q=divmod(i,3)
        if q==0: e(f's_add_u32 m0, s42, {st*12288}\ns_add_u32 s45, s43, {st*12288}')
        e(f'buffer_load_dwordx4 v2, s[24:27], s45 offen offset:{q*1024}{SW} lds')
def reduce4(e,A,T):
    for p in (1,2,3):
        for q in range(4): e(f'ds_write_b128 v{5+p}, {R(A+16*p+4*q)} offset:{q*1024}')
    e('s_waitcnt lgkmcnt(0)\ns_barrier')
    for p in range(3):
        for q in range(4): e(f'ds_read_b128 {R(T+16*p+4*q)}, v5 offset:{p*4096+q*1024}')
def reduce4b(e,A,T):
    for p in range(3):
        e(f's_waitcnt lgkmcnt({8-4*p})')
        for r in range(16): e(f'v_add_f32 v{A+r}, v{A+r}, v{T+16*p+r}')
def red_addr(e):
    for p in (1,2,3):
        e(f's_xor_b32 s4, s20, {p}\ns_mul_i32 s4, s4, 12288\ns_add_u32 s4, s4, {RED+(p-1)*4096}\nv_add_u32 v{5+p}, s4, v2')
    e(f's_mul_i32 s4, s20, 12288\ns_add_u32 s4, s4, {RED}\nv_add_u32 v5, s4, v2')
def resid_epi(e,xo,so):
    for q in range(8): e(f'v_lshlrev_b32 v{32+2*q}, 16, v{XR+q}\nv_and_b32 v{33+2*q}, 0xffff0000, v{XR+q}')
    for r in range(16): e(f'v_add_f32 v{16+r}, v{16+r}, v{32+r}')
    reduce4b(e,16,80)
    for q in range(8): e(f'v_cvt_pk_bf16_f32 v{XR+q}, v{16+2*q}, v{17+2*q}')
def resid_store(e,xo,so):
    e(f'''s_add_u32 s4, s49, {xo}
    buffer_store_dwordx4 {R(XR)}, v2, s[24:27], s4 offen{SC}
    buffer_store_dwordx4 {R(XR+4)}, v2, s[24:27], s4 offen offset:1024{SC}
    v_add_f32 v32, v16, v17
    v_add_f32 v33, v18, v19
    v_mul_f32 v34, v16, v16
    v_mul_f32 v35, v17, v17''')
    for r in range(18,32,2):
        if r>=20: e(f'v_add_f32 v32, v32, v{r}\nv_add_f32 v33, v33, v{r+1}')
        e(f'v_fmac_f32 v34, v{r}, v{r}\nv_fmac_f32 v35, v{r+1}, v{r+1}')
    e(f'''v_add_f32 v32, v32, v33
    v_add_f32 v34, v34, v35
    s_lshl_b32 s4, s12, 12
    s_lshl_b32 s5, s14, 8
    v_permlane32_swap_b32 v32, v34
    s_add_u32 s4, s4, s5
    s_add_u32 s4, s4, {so}
    s_nop 0
    v_add_f32 v32, v32, v34
    buffer_store_dword v32, v3, s[24:27], s4 offen{SC}''')

def gen(e):
    e.kernel('mega_kernel')
    e.rt(0)
    prep.gen(e)
    e(f'''s_load_dwordx2 s[16:17], s[0:1], 56
    v_and_b32 v2, 63, v0
    v_lshlrev_b32 v3, 2, v2
    v_lshlrev_b32 v2, 4, v2
    s_lshl_b32 s10, s21, 2
    s_add_u32 s12, s10, s23
    s_add_u32 s10, s10, s20
    s_and_b32 s4, s20, 1
    s_lshl_b32 s4, s4, 1
    s_add_u32 s12, s12, s4
    s_xor_b32 s13, s12, 2
    s_lshl_b32 s14, s22, 1
    s_lshr_b32 s4, s20, 1
    s_add_u32 s14, s14, s4
    s_xor_b32 s15, s14, 1
    s_mul_i32 s49, s12, 28
    s_lshl_b32 s4, s14, 1
    s_add_u32 s49, s49, s4
    s_lshl_b32 s49, s49, 10
    s_mul_i32 s11, s23, 7
    s_add_u32 s11, s11, s22
    s_lshl_b32 s11, s11, 2
    s_add_u32 s11, s11, s20
    s_mul_i32 s42, s20, 3072
    s_mul_i32 s43, s57, 86016
    s_add_u32 s43, s43, s42
    s_add_u32 s43, s43, {WQKV}
    s_mov_b32 s56, 0
    s_mov_b32 s59, {CNT}
    s_mov_b32 s58, {KVB}
    s_mov_b32 s60, {OF}
    s_mov_b32 s61, {HF}
    s_mov_b32 s28, 0
    s_mov_b32 s29, -1
    s_waitcnt lgkmcnt(0)''')
    def vwait(lab,setup):
        e(f'''s_cmp_eq_u32 s20, 0
        s_cbranch_scc0 {lab}d
        {setup}
        s_mov_b32 s5, 0x8000
        {lab}:
        buffer_load_dword v4, v12, s[24:27], s4 offen sc1
        s_sub_u32 s5, s5, 1
        s_cbranch_scc1 {lab}d
        s_waitcnt vmcnt(0)
        v_cmp_lt_u32 vcc, v4, v13
        s_cbranch_vccnz {lab}
        {lab}d:''')
    vwait('w0',f'''s_lshl_b32 s4, s21, 8
    s_lshl_b32 s5, s57, 8
    s_add_u32 s5, s5, 4096
    v_mov_b32 v12, s4
    v_mov_b32 v13, s5
    v_cndmask_b32 v12, v12, v13, s[28:29]
    v_cndmask_b32 v13, 16, 3, s[28:29]
    s_mov_b32 s4, {CNT+10*4096}''')
    e('s_barrier'); e.rt(6,True)
    qkv_wpre(e,0,NW)
    e(f'buffer_load_dwordx4 {R(XR)}, v2, s[24:27], s49 offen{SW}\nbuffer_load_dwordx4 {R(XR+4)}, v2, s[24:27], s49 offen offset:1024{SW}')
    red_addr(e)
    e('layer:')
    e.rt(1)
    X=64; WB=16; ACC=176; SR=40
    vm=VM(e)
    e(f'''s_mul_i32 s41, s10, 28672
    s_mul_i32 s4, s56, {XF[2]}
    s_add_u32 s41, s41, s4
    s_lshl_b32 s44, s10, 12
    s_mul_i32 s4, s56, {ST[2]-ST[0]}
    s_add_u32 s44, s44, s4
    s_add_u32 s44, s44, {ST[0]}''')
    def xl(ks):
        def f():
            if ks%4==0: e(f's_add_u32 s46, s41, {ks*1024}')
            e(f'buffer_load_dwordx4 {R(X+4*ks)}, v2, s[24:27], s46 offen offset:{(ks%4)*1024}{SL}'); vm.issue(('x',ks))
        return f
    def stl(i,r):
        def f():
            e(f'buffer_load_dword v{r+i}, v3, s[24:27], s44 offen offset:{i*256}{SL}'); vm.issue('st')
        return f
    def wlate(i):
        def f(): qkv_wpre(e,i,i+1); vm.issue('w')
        return f
    for ks in range(8): xl(ks)()
    e(f'''s_lshl_b32 s4, s20, 7
    s_add_u32 s4, s4, {RS}
    v_and_b32 v12, 31, v0
    v_lshl_add_u32 v14, v12, 2, s4
    v_bfe_u32 v13, v0, 5, 1
    v_lshl_add_u32 v15, v13, 4, s4
    v_add_u32 v4, 0xc000, v2''')
    def rd(ks,WB):
        b=WB+12*(ks%2); a,o=('v2',ks*3072) if ks<16 else ('v4',ks*3072-0xc000)
        for j in range(3): e(f'ds_read_b128 v[{b+4*j}:{b+4*j+3}], {a} offset:{o+j*1024}')
    e('s_waitcnt vmcnt(8)\ns_barrier')
    rd(0,WB)
    for ks in range(28):
        if ks==22:
            vm.wait('st')
            for o in stats_calc(SR): e(o)
            e(f'ds_write_b32 v14, v{SR}')
            for a in range(4): e(f'ds_read_b128 v[{224+4*a}:{227+4*a}], v15 offset:{32*a}')
        if ks==15 and NW<21: vm.wait('w'); e('s_barrier')
        if ks+1<28: rd(ks+1,WB)
        vm.wait(('x',ks))
        if ks==0: e.rt(2)
        e(f's_waitcnt lgkmcnt({3 if ks+1<28 else 0})')
        b=WB+12*(ks%2)
        mf=[mfma(ACC,b,X+4*ks,ks==0),mfma(ACC+16,b+4,X+4*ks,ks==0),mfma(ACC+32,X+4*ks,b+8,ks==0)]
        fl=[xl(ks+8)] if ks+8<28 else []
        if 4<=ks<18: fl.append(stl(ks-4,SR))
        if ks<21-NW: fl.append(wlate(NW+ks))
        spread(e,mf,fl)
    e(f'''s_lshl_b32 s47, s57, 6
    s_add_u32 s47, s47, s10
    s_lshl_b32 s47, s47, 12
    s_add_u32 s47, s47, s58
    v_cmp_eq_u32 s[30:31], 28, v12
    v_mul_f32 v{SR+1}, 0x3e8b97f6, v{SR}
    v_mov_b32 v9, 0x3f803f80
    v_mov_b32 v10, 0x3f80
    v_mov_b32 v11, {FLAG}
    s_lshl_b32 s4, s20, 11
    s_add_u32 s4, s4, {QX}
    v_add_u32 v13, s4, v2
    ds_write_b32 v11, v1
    s_nop 2''')
    for j in (1,2,0):
        a=ACC+16*j; t=64+8*j
        for r in range(16): e(f'v_mul_f32 v{a+r}, v{[SR+1,SR,224+r][j]}, v{a+r}')
        for q in range(8): e(f'v_cvt_pk_bf16_f32 v{t+q}, v{a+2*q}, v{a+2*q+1}')
        if j==0:
            e(f'v_cndmask_b32 v{t+6}, v{t+6}, v1, s[28:29]\nv_cndmask_b32 v{t+7}, v{t+7}, v1, s[28:29]\ns_nop 1')
            e(mfma(96,72,64,True)); e(mfma(96,76,68,False))
        if j==1: e(f'v_cndmask_b32 v{t+6}, v{t+6}, v9, s[28:29]\nv_cndmask_b32 v{t+7}, v{t+7}, v10, s[28:29]')
        if j==2:
            for q in range(8): e(f'v_cndmask_b32 v{t+q}, v{t+q}, v9, s[30:31]')
        if j>0:
            o=(j-1)*2048
            e(f'buffer_store_dwordx4 {R(t)}, v2, s[24:27], s47 offen offset:{o}{SC}\nbuffer_store_dwordx4 {R(t+4)}, v2, s[24:27], s47 offen offset:{o+1024}{SC}')
        if j==2:
            e.rt(3)
            signal(e,0,'s57',extra=f's_cmp_eq_u32 s56, 0\ns_cbranch_scc0 wdn{uid[0]}\ns_lshl_b32 s4, s21, 8\ns_add_u32 s4, s4, {CNT+10*4096+128}\nbuffer_atomic_add v4, v1, s[24:27], s4 offen sc1\nwdn{uid[0]}:')
    e('s_nop 15')
    e('v_max3_f32 v16, v96, v97, v98')
    for r in range(3,15,2): e(f'v_max3_f32 v16, v16, v{96+r}, v{97+r}')
    e('''v_max_f32 v16, v16, v111
    v_mov_b32 v17, v16
    s_nop 1
    v_permlane32_swap_b32 v16, v17
    s_nop 1
    v_max_f32 v16, v16, v17
    v_cvt_pk_bf16_f32 v16, -v16, 0
    v_cndmask_b32 v70, v70, v16, s[28:29]
    ds_write_b128 v13, v[64:67]
    ds_write_b128 v13, v[68:71] offset:1024''')
    Q=12; O=44; S=(108,124); P=(140,148); RING=156; T=220
    e(f'''s_lshl_b32 s44, s57, 18
    s_add_u32 s44, s44, s58
    s_lshl_b32 s4, s20, 16
    s_add_u32 s44, s44, s4
    s_mov_b32 s52, 0
    s_lshl_b32 s50, s14, 15
    s_lshl_b32 s51, s15, 15
    s_lshl_b32 s4, s20, 13
    s_add_u32 s4, s4, {WO}
    s_add_u32 s50, s50, s4
    s_add_u32 s51, s51, s4
    s_mul_i32 s53, s11, 57344
    s_add_u32 s53, s53, {WGU}''')
    e(f'v_and_b32 v{T}, 15, v0\nv_lshlrev_b32 v{T}, 8, v{T}\ns_mov_b32 s48, {CNT+10*4096+128}')
    wait(e,0,'s57',16)
    e.rt(4)
    def qread():
        for j in range(4):
            e(f's_xor_b32 s4, s20, {j}\ns_lshl_b32 s4, s4, 11\ns_add_u32 s4, s4, {QX}\nv_add_u32 v4, s4, v2\nds_read_b128 {R(Q+8*j)}, v4\nds_read_b128 {R(Q+8*j+4)}, v4 offset:1024')
    vm=VM(e)
    def ring(kb,q): return RING+16*(kb%4)+4*q
    def kvl(kb,q):
        if q==0: e(f's_add_u32 s45, s44, {kb*4096}')
        e(f'buffer_load_dwordx4 {R(ring(kb,q))}, v2, s[24:27], s45 offen offset:{q*1024}{SL}'); vm.issue(kb)
    def pre(i):
        if i<16:
            ks,p=divmod(i,2)
            if i==8: e('s_add_u32 s50, s50, 4096\ns_add_u32 s51, s51, 4096')
            e(f'buffer_load_dwordx4 {R(256+192+8*ks+4*p)}, v2, s[24:27], s{50+p} offen offset:{(ks%4)*1024}{SW}')
        else:
            i-=16
            if i%4==0: e(f's_add_u32 s46, s53, {i*1024}')
            e(f'buffer_load_dwordx4 {R(256+4*i)}, v2, s[24:27], s46 offen offset:{(i%4)*1024}{SW}')
        vm.issue('p')
    for q in range(4): kvl(0,q)
    qread()
    e('attn_main:')
    for kb in range(1,3):
        for q in range(4): kvl(kb,q)
    def qk(t,h): e(mfma(S[t%2],ring(t//4,h),Q+8*(t%4)+4*h,h==0))
    def pv(t,h): e(mfma(O+16*(t%4),ring(t//4,2+h),P[t%2]+4*h,t<4 and h==0))
    def ex(t,a,b):
        for r in range(a,b): e(f'v_exp_f32 v{S[t%2]+r}, v{S[t%2]+r}')
    def cv(t,a,b):
        for q in range(a,b): e(f'v_cvt_pk_bf16_f32 v{P[t%2]+q}, v{S[t%2]+2*q}, v{S[t%2]+2*q+1}')
    e('s_waitcnt lgkmcnt(0)'); vm.wait(0); e.rt(5); qk(0,0); qk(0,1); e('s_nop 10')
    NT=64
    for t in range(NT):
        if t+1<NT:
            if (t+1)%4==0: vm.wait((t+1)//4)
            qk(t+1,0)
        ex(t,0,4)
        if t+1<NT: qk(t+1,1)
        ex(t,4,8); cv(t,0,2)
        if t>0: pv(t-1,1)
        if t//4+3<16: kvl(t//4+3,t%4)
        ex(t,8,12); cv(t,2,4); ex(t,12,14)
        pv(t,0)
        if t==PT-5: e(f'buffer_load_dword v{T+1}, v{T}, s[24:27], s48 offen sc1'); vm.issue('wa')
        if t==PT-1:
            vm.wait('wa')
            e(f'''s_mov_b32 s5, 0x8000
            s_branch wallc
            wall:
            buffer_load_dword v{T+1}, v{T}, s[24:27], s48 offen sc1
            s_waitcnt vmcnt(0)
            wallc:
            v_cmp_gt_u32 vcc, 16, v{T+1}
            s_sub_u32 s5, s5, 1
            s_cbranch_scc1 walld
            s_cbranch_vccnz wall
            walld:''')
        if t>=PT:
            for i in range(64*(t-PT)//(64-PT),64*(t+1-PT)//(64-PT)): pre(i)
        ex(t,14,16); cv(t,4,8)
    e('s_nop 1'); pv(NT-1,1)
    e.rt(6)
    e(f'''s_sub_u32 s50, s50, 4096
    s_sub_u32 s51, s51, 4096
    s_lshl_b32 s4, s10, 5
    s_lshl_b32 s5, s57, 1
    s_add_u32 s4, s4, s5
    s_lshl_b32 s4, s4, 10
    s_add_u32 s47, s4, s60
    s_nop 7''')
    reduce4(e,O,RING); reduce4b(e,O,RING)
    e(f'''v_mov_b32 v{T}, v{O+12}
    v_mov_b32 v{T+1}, v{O+12}
    s_mov_b32 s5, {'0.5' if FORCE_FALLBACK else '0x4e800000'}
    s_nop 0
    v_permlane32_swap_b32 v{T}, v{T+1}
    s_nop 1
    v_rcp_f32 v{T}, v{T+1}
    v_cmp_nle_f32 vcc, 0x30800000, v{T+1}
    v_cmp_nge_f32 s[30:31], s5, v{T+1}''')
    for r in range(16): e(f'v_mul_f32 v{O+r}, v{O+r}, v{T}')
    for q in range(8): e(f'v_cvt_pk_bf16_f32 v{S[0]+q}, v{O+2*q}, v{O+2*q+1}')
    e(f'''buffer_store_dwordx4 {R(S[0])}, v2, s[24:27], s47 offen{SC}
    buffer_store_dwordx4 {R(S[0]+4)}, v2, s[24:27], s47 offen offset:1024{SC}
    s_or_b64 vcc, vcc, s[30:31]
    s_cbranch_vccz attn_ok
    v_mov_b32 v4, 1
    ds_write_b32 v11, v4
    attn_ok:''')
    e.rt(7)
    def chk():
        e('''ds_read_b32 v4, v11
        s_waitcnt lgkmcnt(0)
        v_readfirstlane_b32 s4, v4
        s_cmp_gt_u32 s4, s52
        s_cbranch_scc1 attn_fb''')
    signal(e,1,'s21',chk)
    e('s_cmp_eq_u32 s22, 7\ns_cbranch_scc1 idle')
    e(f'''s_lshl_b32 s44, s12, 15
    s_lshl_b32 s45, s13, 15
    s_lshl_b32 s4, s20, 13
    s_add_u32 s4, s4, s60
    s_add_u32 s44, s44, s4
    s_add_u32 s45, s45, s4''')
    wait(e,1,'s21',16)
    e.rt(8)
    vm=VM(e)
    for ks in range(8):
        if ks==4: e('s_add_u32 s44, s44, 4096\ns_add_u32 s45, s45, 4096')
        for p in range(2):
            e(f'buffer_load_dwordx4 {R(128+8*ks+4*p)}, v2, s[24:27], s{44+p} offen offset:{(ks%4)*1024}{SL}'); vm.issue(ks)
    for ks in range(8):
        vm.wait(ks)
        for p in range(4): e(mfma(16+16*p,256+192+8*ks+4*(p>>1),128+8*ks+4*(p&1),ks==0))
    e('s_nop 7\ns_nop 3')
    for i in range(48,56):
        if i%4==0: e(f's_add_u32 s46, s53, {i*1024}')
        e(f'buffer_load_dwordx4 {R(256+4*i)}, v2, s[24:27], s46 offen offset:{(i%4)*1024}{SW}')
    reduce4(e,16,80)
    e(f's_mul_i32 s54, s56, {XF[2]}\ns_add_u32 s54, s54, {XF[1]}\ns_mul_i32 s55, s56, {ST[2]-ST[0]}\ns_add_u32 s55, s55, {ST[1]}')
    resid_epi(e,0,0); resid_store(e,'s54','s55')
    e.rt(9)
    signal(e,2,'s21')
    XB=16; ACC=64; SR=40; PK=192
    e(f'''s_mul_i32 s41, s21, 114688
    s_add_u32 s41, s41, s54
    s_mul_i32 s38, s20, 14336
    s_add_u32 s51, s38, 57344
    s_add_u32 s50, s51, s41
    s_and_b32 s40, s20, 1
    s_mul_i32 s40, s40, 28672
    s_lshr_b32 s4, s20, 1
    s_lshl_b32 s4, s4, 11
    s_add_u32 s40, s40, s4
    s_add_u32 s41, s41, s40
    s_lshl_b32 s48, s20, 13
    s_add_u32 s48, s48, 114688
    v_add_u32 v10, s48, v2
    s_lshl_b32 s39, s21, 8
    s_add_u32 s39, s39, s59
    s_add_u32 s39, s39, {3*4096}
    s_lshl_b32 s44, s10, 12
    s_add_u32 s44, s44, s55
    s_lshl_b32 s4, s20, 7
    v_and_b32 v12, 31, v0
    v_lshlrev_b32 v13, 2, v12
    v_add_u32 v13, {RS2}, v13
    v_add_u32 v14, s4, v13
    v_add_u32 v15, 57344, v2
    v_add_u32 v9, s38, v2
    s_mul_i32 s4, s21, {4*112*1024}
    s_lshl_b32 s5, s11, 11
    s_add_u32 s4, s4, s5
    s_add_u32 s32, s4, s61
    s_add_u32 s33, s32, {112*1024}
    s_add_u32 s34, s33, {112*1024}
    s_add_u32 s35, s34, {112*1024}
    s_mul_i32 s36, s14, 114688
    s_mul_i32 s37, s15, 114688
    s_mul_i32 s4, s20, 28672
    s_add_u32 s4, s4, {WD}
    s_add_u32 s36, s36, s4
    s_add_u32 s37, s37, s4''')
    wait(e,2,'s21',14)
    e.rt(10)
    vm=VM(e); lg=VM(e,'lgkmcnt',15)
    def wreg(ks,u): return 256+8*ks+4*u
    def dl(st,q):
        def f():
            if q==0: e(f's_add_u32 m0, s40, {st*4096}\ns_add_u32 s45, s41, {st*4096}')
            e(f'buffer_load_dwordx4 v2, s[24:27], s45 offen offset:{q*1024}{SL} lds'); vm.issue(('d',st))
        return f
    def d23(q):
        def f():
            if q%4==0: e(f's_add_u32 m0, s51, {q*1024}\ns_add_u32 s46, s50, {q*1024}')
            e(f'buffer_load_dwordx4 v2, s[24:27], s46 offen offset:{(q%4)*1024}{SL} lds'); vm.issue('x23')
        return f
    def wdreg(ks,p):
        if ks<4: return 256+224+8*ks+4*p
        if ks<12: return 64+8*(ks-4)+4*p
        i=2*(ks-12)+p
        return wreg(i,0) if i<28 else wreg(i-28,1)
    def wd(ks,p):
        def f():
            if ks%4==0: e(f's_add_u32 s{46+p}, s{36+p}, {ks*1024}')
            e(f'buffer_load_dwordx4 {R(wdreg(ks,p))}, v2, s[24:27], s{46+p} offen offset:{(ks%4)*1024}{SW}'); vm.issue('wd')
        return f
    def stg(ks,p): return ('s48','v10',p*4096,17) if ks<21 else ('s38','v9',p*7168,21)
    def wdl(ks,p):
        sb,vb,o,k0=stg(ks,p)
        def f():
            if (ks-k0)%4==0: e(f's_add_u32 m0, {sb}, {o+(ks-k0)*1024}\ns_add_u32 s45, s{36+p}, {ks*1024}')
            e(f'buffer_load_dwordx4 v2, s[24:27], s45 offen offset:{(ks-k0)%4*1024}{SW} lds'); vm.issue('wdl')
        return f
    def wdr(ks,p):
        sb,vb,o,k0=stg(ks,p)
        def f():
            e(f'ds_read_b128 {R(wdreg(ks,p))}, {vb} offset:{o+(ks-k0)*1024}'); lg.issue('w')
        return f
    AH=3
    for st in range(AH):
        for q in range(2): dl(st,q)()
    def rda(ks):
        for j in range(2): e(f'ds_read_b128 {R(XB+8*(ks%2)+4*j)}, v2 offset:{ks*1024+j*28672}')
    def rdx(i):
        o=i*1024 if i<56 else (i-28)*1024
        e(f'ds_read_b128 {R(224+4*(i%4))}, v15 offset:{o}'); lg.issue(i)
    vm.wait(('d',0)); e('s_barrier'); e.rt(11); rda(0)
    fills=[[stl(i,SR) for i in range(7)],[stl(i,SR) for i in range(7,14)],[d23(q) for q in range(8)],[d23(q) for q in range(8,14)],
           [wd(q//2,q%2) for q in range(8)],[wdl(17+q%4,q//4) for q in range(8)],[]]
    for st in range(7):
        fill=([dl(st+AH,q) for q in range(2)] if st+AH<7 else [])+fills[st]
        for k in range(4):
            ks=4*st+k
            if ks==17:
                vm.wait('st')
                for o in stats_calc(SR): e(o)
                e(f'ds_write_b32 v14, v{SR}')
            if ks==21:
                for j in range(4): e(f'ds_read_b32 v{244+j}, v13 offset:{128*j}')
            if ks+1<28:
                if k==3: vm.wait(('d',st+1)); e('s_waitcnt lgkmcnt(0)\ns_barrier') if ks==19 else e('s_barrier')
                rda(ks+1)
            e(f's_waitcnt lgkmcnt({2 if ks+1<28 else 0})')
            if ks==27:
                vm.wait('x23'); e('s_barrier')
                for q in range(2): rdx(q)
            b=XB+8*(ks%2)
            mf=[mfma(ACC+32*j+16*u,wreg(ks,u),b+4*j,ks==0) for j in range(2) for u in range(2)]
            fl=fill[len(fill)*k//4:len(fill)*(k+1)//4]
            if ks==22: fl=fl+[f'v_rcp_f32 v{240+j}, v{244+j}\nv_mul_f32 v{244+j}, 0xbfb8aa3b, v{244+j}' for j in range(4)]
            spread(e,mf,fl)
    def epi(j,part=3,tag='s'):
        G=ACC+32*j; U=G+16; t=PK+8*j; o=[]
        def st(h):
            def f():
                e(f'buffer_store_dwordx4 v[{t+h//2}:{t+h//2+3}], v2, s[24:27], s{32+j} offen offset:{h*128}{SC}'); vm.issue(tag)
            return f
        for h in (0,8):
            rr=range(h,h+8)
            if part&1:
                o+=[f'v_mul_f32 v{G+r}, v{244+j}, v{G+r}' for r in rr]
                o+=[f'v_exp_f32 v{G+r}, v{G+r}' for r in rr]
                o+=[f'v_fma_f32 v{G+r}, v{G+r}, v{240+j}, v{240+j}' for r in rr]
                o+=[f'v_rcp_f32 v{G+r}, v{G+r}' for r in rr]
            if part&2:
                o+=[f'v_mul_f32 v{U+r}, v{U+r}, v{G+r}' for r in rr]
                o+=[f'v_cvt_pk_bf16_f32 v{t+r//2}, v{U+r}, v{U+r+1}' for r in range(h,h+8,2)]
                o+=[st(h)]
        return o
    def merge(a,b):
        o=[]; k=0
        for i,x in enumerate(a):
            o.append(x)
            while k<len(b)*(i+1)//len(a): o.append(b[k]); k+=1
        return o
    def run(x): x() if callable(x) else e(x)
    if GUST: e.rt(2)
    ops=merge(epi(0,3,'sA'),[wdl(21+q%7,q//7) for q in range(14)])+merge(epi(1,3,'sA'),[wd(4+q//2,q%2) for q in range(8)]); n=len(ops)
    for ks in range(28):
        if ks%2==0: rdx(ks+2); rdx(ks+3); lg.wait(ks+1)
        mf=[mfma(ACC+64+16*u,wreg(ks,u),224+4*(ks%4),ks==0) for u in range(2)]
        fl=ops[n*ks//28:n*(ks+1)//28]
        if ks==0: e(mf[0]); e(mf[1]); e('s_nop 7'); [run(x) for x in fl]
        else: spread(e,mf,fl)
    if GUST: e.rt(5)
    DRED=65536; D=12; PRE=10; DA=128
    def hl(i):
        def f():
            if i%4==0: e(f's_add_u32 s45, s44, {i*1024 if i<28 else 2*114688+(i-28)*1024}')
            e(f'buffer_load_dwordx4 {R(16+4*(i%D))}, v2, s[24:27], s45 offen offset:{(i%4)*1024}{SL}'); vm.issue(i)
        return f
    def poll(off,reg,lab):
        e(f'''s_mov_b32 s5, 0x8000
        s_branch {lab}c
        {lab}:
        buffer_load_dword v{reg}, v1, s[24:27], s39 offen offset:{off} sc1
        s_waitcnt vmcnt(0)
        {lab}c:
        v_readfirstlane_b32 s6, v{reg}
        s_sub_u32 s5, s5, 1
        s_cbranch_scc1 {lab}d
        s_cmp_lt_u32 s6, 14
        s_cbranch_scc1 {lab}
        {lab}d:''')
    e(f'''s_lshl_b32 s44, s21, 2
    s_add_u32 s44, s44, s23
    s_mul_i32 s44, s44, 114688
    s_mul_i32 s4, s20, 28672
    s_add_u32 s4, s4, s61
    s_add_u32 s44, s44, s4''')
    o1=epi(2,3,'sB'); o2=epi(3,1); lds=[wd(8+q//2,q%2) for q in range(18)]
    rds=[wdr(17+q//2,q%2) for q in range(22)]
    for i in range(56):
        if i%2==0:
            if i+30<84: rdx(i+30); rdx(i+31)
            lg.wait(29+i)
        e(mfma(ACC+96+16*(i//28),wreg(i%28,i//28),224+4*(i%4),i%28==0))
        if i==0: e('s_nop 7')
        fl=o1[len(o1)*i//33:len(o1)*(i+1)//33] if i<33 else o2[len(o2)*(i-33)//23:len(o2)*(i-32)//23]
        if i<PA: fl=fl+lds[18*i//PA:18*(i+1)//PA]
        if GUST and i==28: e.rt(4)
        if i==SIGA: vm.wait('sA'); signal(e,3,'s21',off=128,drain=False)
        if 24<=i<46: fl=fl+[rds[i-24]]
        if i==PL: e('buffer_load_dword v13, v1, s[24:27], s39 offen offset:128 sc1'); vm.issue('poll')
        for x in fl: run(x)
    fin=[f'''s_lshr_b32 s4, s20, 1
    s_lshl_b32 s4, s4, 15
    s_lshl_b32 s5, s20, 12
    s_add_u32 s5, s5, {DRED}
    s_add_u32 s6, s4, s5
    v_add_u32 v9, s6, v2
    s_xor_b32 s4, s4, 32768
    s_add_u32 s6, s4, s5
    v_add_u32 v10, s6, v2
    s_lshl_b32 s4, s20, 14
    s_add_u32 s4, s4, {DRED}
    v_add_u32 v12, s4, v2''']+['s_nop 7']
    e('s_waitcnt lgkmcnt(0)')
    for o in fin+epi(3,2,'sB'): run(o)
    e.rt(12)
    vm.wait('poll'); poll(128,13,'pollA')
    for i in range(PRE): hl(i)()
    vm.wait('sB'); signal(e,3,'s21',drain=False)
    e.rt(13)
    def dw(t,nr,q): return f'ds_write_b128 v{9+nr}, {R(DA+32*t+16*nr+4*q)} offset:{t*16384+q*1024}'
    for i in range(56):
        if GUST and i==28: e.rt(3)
        if i==28-PRE-4: e('buffer_load_dword v13, v1, s[24:27], s39 offen sc1'); vm.issue('poll')
        if i+PRE==28: vm.wait('poll'); poll(0,13,'pollB')
        vm.wait(i)
        mf=[mfma(DA+32*(i//28)+16*p,wdreg(i%28,p),16+4*(i%D),i%28==0) for p in range(2)]
        fl=[hl(i+PRE)] if i+PRE<56 else []
        if 32<=i<48 and i%2==0: fl.append(dw(0,(i-32)//8,(i-32)//2%4))
        spread(e,mf,fl)
    e.rt(14)
    for q in range(8): e(f'v_lshlrev_b32 v{16+2*q}, 16, v{XR+q}\nv_and_b32 v{17+2*q}, 0xffff0000, v{XR+q}')
    for nr in range(2):
        for q in range(4): e(dw(1,nr,q))
    e('s_waitcnt lgkmcnt(0)\ns_barrier')
    for p in range(4):
        for q in range(4): e(f'ds_read_b128 {R(64+16*p+4*q)}, v12 offset:{p*4096+q*1024}')
    for p in range(4):
        e(f's_waitcnt lgkmcnt({12-4*p})')
        for r in range(16): e(f'v_add_f32 v{16+r}, v{16+r}, v{64+16*p+r}')
    for q in range(8): e(f'v_cvt_pk_bf16_f32 v{XR+q}, v{16+2*q}, v{17+2*q}')
    e('s_cmp_eq_u32 s56, 1\ns_cbranch_scc1 final')
    resid_store(e,XF[2],ST[2])
    e.rt(15)
    signal(e,4,'s21')
    qkv_wpre(e,0,NW)
    e('next:')
    e.rtflush()
    e(f's_mov_b32 s56, 1\ns_add_u32 s59, s59, 20480\ns_mov_b32 s58, {KV1}\ns_mov_b32 s60, {OF1}\ns_mov_b32 s61, {HF1}')
    wait(e,4,'s21',14,back=20480,drain=False)
    e('s_branch layer\nidle:\ns_cmp_eq_u32 s56, 0\ns_cbranch_scc1 next')
    e.rtflush(); e('s_endpgm\nfinal:')
    e.srd(32,16,1835008)
    e(f'''v_and_b32 v9, 31, v0
    v_bfe_u32 v4, v0, 5, 1
    v_mul_u32_u24 v9, 896, v9
    v_lshl_add_u32 v9, v4, 4, v9
    s_mul_i32 s4, s12, 28672
    s_lshl_b32 s5, s14, 6
    s_add_u32 s4, s4, s5
    v_permlane32_swap_b32 v{XR}, v{XR+2}
    v_permlane32_swap_b32 v{XR+1}, v{XR+3}
    v_permlane32_swap_b32 v{XR+4}, v{XR+6}
    v_permlane32_swap_b32 v{XR+5}, v{XR+7}
    s_nop 1
    buffer_store_dwordx4 {R(XR)}, v9, s[32:35], s4 offen
    buffer_store_dwordx4 {R(XR+4)}, v9, s[32:35], s4 offen offset:32''')
    if PROF[0]: e('s_waitcnt vmcnt(0)')
    e.rt(15); e.rtflush(); e('s_endpgm')
    e('attn_fb:\ns_mov_b32 s52, 1\ns_mov_b32 s45, s44\ns_mov_b32 s4, 16')
    for j in range(4): e(f'v_mov_b32 v{T+j}, 0xff800000\nv_cndmask_b32 v{Q+8*j+6}, v{Q+8*j+6}, v1, s[28:29]')
    e(f'''attn_fbl:
    buffer_load_dwordx4 {R(RING)}, v2, s[24:27], s45 offen{SL}
    buffer_load_dwordx4 {R(RING+4)}, v2, s[24:27], s45 offen offset:1024{SL}
    s_add_u32 s45, s45, 4096
    s_waitcnt vmcnt(0)''')
    for j in range(4): e(mfma(O+16*j,RING,Q+8*j,True)); e(mfma(O+16*j,RING+4,Q+8*j+4,False))
    e('s_nop 15')
    for j in range(4):
        for r in range(0,16,2): e(f'v_max3_f32 v{T+j}, v{T+j}, v{O+16*j+r}, v{O+16*j+r+1}')
    e('s_sub_u32 s4, s4, 1\ns_cmp_lg_u32 s4, 0\ns_cbranch_scc1 attn_fbl\nv_and_b32 v4, 31, v0\nv_lshlrev_b32 v4, 2, v4')
    for j in range(4):
        e(f'''v_mov_b32 v{T+4}, v{T+j}
        s_xor_b32 s4, s20, {j}
        s_lshl_b32 s4, s4, 9
        v_permlane32_swap_b32 v{T+j}, v{T+4}
        s_add_u32 s4, s4, {MX}
        v_add_u32 v{T+8+j}, s4, v4
        s_lshl_b32 s5, s20, 7
        v_max_f32 v{T+j}, v{T+j}, v{T+4}
        v_add_u32 v{T+5}, s5, v{T+8+j}
        ds_write_b32 v{T+5}, v{T+j}''')
    e('s_waitcnt lgkmcnt(0)\ns_barrier')
    for j in range(4):
        for k in range(4): e(f'ds_read_b32 v{O+4*j+k}, v{T+8+j} offset:{k*128}')
    e('s_waitcnt lgkmcnt(0)')
    for j in range(4):
        b=O+4*j
        e(f'''v_max3_f32 v{b}, v{b}, v{b+1}, v{b+2}
        v_max_f32 v{b}, v{b}, v{b+3}
        v_cvt_pk_bf16_f32 v{b+1}, -v{b}, 0
        v_lshlrev_b32 v{b+2}, 16, v{b+1}
        v_sub_f32 v{b}, -v{b}, v{b+2}
        v_cvt_pk_bf16_f32 v{b+2}, v{b}, 0
        v_lshlrev_b32 v{b+2}, 16, v{b+2}
        v_sub_f32 v{b}, v{b}, v{b+2}
        v_or_b32 v{b+1}, v{b+1}, v{b+2}
        v_cvt_pk_bf16_f32 v{b}, v{b}, 0
        v_cndmask_b32 v{Q+8*j+6}, v{Q+8*j+6}, v{b+1}, s[28:29]
        v_cndmask_b32 v{Q+8*j+7}, v{Q+8*j+7}, v{b}, s[28:29]''')
    e(f's_mov_b32 s45, s44\nv_and_b32 v{T}, 15, v0\nv_lshlrev_b32 v{T}, 8, v{T}')
    for q in range(4): e(f'buffer_load_dwordx4 {R(RING+4*q)}, v2, s[24:27], s45 offen offset:{q*1024}{SL}')
    e('s_branch attn_main\nmega_end:\ns_endpgm')
    e.kd('mega_kernel',512,256)
    e.launch.append(f'; @launch kernel=mega_kernel grid=(256,1,1) block=(256,1,1) lds={LDS}')
```

```python
from common import *
def xpart(e,u):
    e(f'''s_cmp_ge_u32 s58, 14
    s_cbranch_scc1 prep_nx2{u}
    s_mov_b32 s46, 0x3f803f80
    v_mov_b32 v152, 0
    v_mov_b32 v153, 0
    v_lshrrev_b32 v154, 2, v4''')
    for k in range(2):
        e(f'buffer_store_dwordx4 v[{144+4*k}:{147+4*k}], v4, s[24:27], s59 offen offset:{1024*k} sc1')
        for q in range(4): e(f'v_dot2_f32_bf16 v152, v{144+4*k+q}, s46, v152\nv_dot2_f32_bf16 v153, v{144+4*k+q}, v{144+4*k+q}, v153')
    e(f'''s_nop 4
    v_permlane32_swap_b32 v152, v153
    s_nop 1
    v_add_f32 v152, v152, v153
    buffer_store_dword v152, v154, s[24:27], s60 offen sc1
    prep_nx2{u}:
    buffer_load_dword v155, v1, s[52:55], 0 offen sc1''')
def xsig(e,u):
    e(f'''s_mov_b32 s5, 0x8000
    s_branch prep_flc{u}
    prep_fl{u}:
    buffer_load_dword v155, v1, s[52:55], 0 offen sc1
    prep_flc{u}:
    s_waitcnt vmcnt(0)
    v_readfirstlane_b32 s6, v155
    s_sub_u32 s5, s5, 1
    s_cbranch_scc1 prep_fld{u}
    s_cmp_eq_u32 s6, 0
    s_cbranch_scc1 prep_fl{u}
    prep_fld{u}:
    v_mov_b32 v152, 1
    s_barrier
    s_cmp_eq_u32 s20, 0
    s_cbranch_scc0 prep_sg{u}
    s_lshl_b32 s4, s21, 8
    s_add_u32 s4, s4, {CNT+10*4096}
    s_mov_b64 exec, 1
    buffer_atomic_add v152, v1, s[24:27], s4 offen sc1
    s_mov_b64 exec, -1
    prep_sg{u}:''')
def gen(e):
    e('''s_load_dwordx4 s[4:7], s[0:1], 0
    s_load_dwordx2 s[8:9], s[0:1], 16
    s_load_dwordx4 s[12:15], s[0:1], 32
    s_load_dwordx2 s[16:17], s[0:1], 48
    s_load_dwordx2 s[18:19], s[0:1], 72
    s_load_dwordx2 s[10:11], s[0:1], 64
    s_cmp_ge_u32 s2, 256
    s_cbranch_scc1 mega_end
    s_and_b32 s41, s2, 7
    s_lshr_b32 s42, s2, 3
    s_lshr_b32 s21, s41, 1
    s_lshl_b32 s21, s21, 2
    s_lshr_b32 s43, s42, 3
    s_add_u32 s21, s21, s43
    s_and_b32 s23, s41, 1
    s_and_b32 s22, s42, 7
    s_lshl_b32 s57, s23, 3
    s_add_u32 s57, s57, s22
    v_lshrrev_b32 v1, 6, v0
    v_and_b32 v2, 31, v0
    v_readfirstlane_b32 s20, v1
    v_bfe_u32 v3, v0, 5, 1
    v_and_b32 v4, 63, v0
    v_lshlrev_b32 v4, 4, v4
    s_waitcnt lgkmcnt(0)''')
    e.srd(24,18,WS_BYTES)
    e.srd(52,10,256); e.srd(28,4,1835008)
    e(f'''s_lshr_b32 s41, s57, 2
    s_lshl_b32 s42, s21, 2
    s_add_u32 s41, s41, s42
    s_and_b32 s42, s57, 3
    s_lshl_b32 s42, s42, 2
    s_add_u32 s58, s42, s20
    s_mul_i32 s59, s41, 28672
    s_lshl_b32 s43, s58, 6
    s_add_u32 s42, s59, s43
    s_lshl_b32 s43, s58, 11
    s_add_u32 s59, s59, s43
    s_lshl_b32 s60, s41, 12
    s_lshl_b32 s43, s58, 8
    s_add_u32 s60, s60, s43
    s_add_u32 s60, s60, {ST[0]}
    v_mul_u32_u24 v5, 896, v2
    v_lshl_add_u32 v5, v3, 3, v5
    s_cmp_ge_u32 s58, 14
    s_cbranch_scc1 prep_nx''')
    for k in range(2):
        e(f'buffer_load_dwordx2 v[{144+4*k}:{145+4*k}], v5, s[28:31], s42 offen offset:{32*k}\nbuffer_load_dwordx2 v[{146+4*k}:{147+4*k}], v5, s[28:31], s42 offen offset:{32*k+16}')
    e('prep_nx:')
    e('v_mov_b32 v1, 0\ns_cmp_ge_u32 s2, 230\ns_cbranch_scc1 prep_idle')
    e(f'''s_mov_b32 s31, 0x20000
    s_mov_b32 s37, 1
    s_mov_b32 s38, 7
    s_mov_b32 s39, 32
    s_mov_b32 s40, 0
    s_mov_b32 s36, 1024
    s_mul_i32 s34, s20, 7
    s_cmp_ge_u32 s2, 48
    s_cbranch_scc1 prep_t1
    s_mov_b32 s28, s6
    s_and_b32 s29, s7, 0xffff
    s_mov_b32 s30, 1204224
    s_mov_b32 s32, 2688
    s_mul_i32 s33, s2, 56
    s_mov_b32 s39, 28
    s_mov_b32 s36, 3072
    s_and_b32 s41, s2, 15
    s_lshr_b32 s42, s2, 4
    s_mul_i32 s35, s41, 28
    s_add_u32 s35, s35, s34
    s_mul_i32 s35, s35, 3
    s_add_u32 s35, s35, s42
    s_lshl_b32 s35, s35, 10
    s_add_u32 s35, s35, {WQKV}
    prep_go:''')
    e('''v_bfe_u32 v5, v0, 2, 4
    v_mul_lo_u32 v5, v5, s32
    v_and_b32 v6, 3, v0
    v_lshl_add_u32 v5, v6, 4, v5
    v_add_u32 v5, s33, v5
    s_lshl_b32 s47, s20, 13
    v_add_u32 v7, s47, v4''')
    for k in range(8):
        if k==7: e('s_cmp_lt_u32 s38, 8\ns_cbranch_scc1 prep_ld_done')
        e(f's_add_u32 s41, s34, {k}\ns_lshl_b32 s42, s41, 4\ns_lshr_b32 s43, s41, 1\ns_lshl_b32 s43, s43, 2\ns_mul_i32 s43, s43, s40\ns_sub_u32 s42, s42, s43\ns_mul_i32 s42, s42, s32')
        e(f'buffer_load_dwordx4 {R(80+4*k)}, v5, s[28:31], s42 offen')
    e('prep_ld_done:'); e.rt(2,True)
    e('''v_bfe_u32 v8, v0, 2, 2
    v_lshl_add_u32 v8, v3, 2, v8
    v_lshlrev_b32 v8, 6, v8
    v_bfe_u32 v9, v0, 4, 1
    v_lshl_add_u32 v8, v9, 5, v8
    v_lshl_add_u32 v8, v6, 3, v8
    v_add_u32 v8, s47, v8
    v_cmp_gt_u32 s[48:49], s39, v2
    v_cmp_ne_u32 vcc, 0, v3
    s_cmp_eq_u32 s40, 1
    s_cselect_b64 s[44:45], vcc, 0
    v_mov_b32 v9, 0
    s_waitcnt vmcnt(0)''')
    e.rt(3,True)
    xpart(e,'b')
    for k in range(8): e(f'ds_write_b128 v7, {R(80+4*k)} offset:{k*1024}')
    for k in range(8):
        e(f'ds_read_b64_tr_b16 v[{112+4*k}:{113+4*k}], v8 offset:{k*1024}\nds_read_b64_tr_b16 v[{114+4*k}:{115+4*k}], v8 offset:{k*1024+512}')
    e('s_waitcnt lgkmcnt(0)')
    for k in range(1,8,2): e(f'v_cndmask_b32 v{114+4*k}, v{114+4*k}, v9, s[44:45]\nv_cndmask_b32 v{115+4*k}, v{115+4*k}, v9, s[44:45]')
    e('s_cmp_eq_u32 s37, 0\ns_cbranch_scc1 prep_nocenter')
    e('s_mov_b32 s46, 0x3f803f80')
    for c in range(4): e(f'v_mov_b32 v{10+c}, 0')
    for r in range(28): e(f'v_dot2_f32_bf16 v{10+r%4}, v{112+r}, s46, v{10+r%4}')
    e('''v_lshlrev_b32 v14, 2, v0
    s_nop 2
    v_add_f32 v10, v10, v11
    v_add_f32 v12, v12, v13
    v_add_f32 v10, v10, v12
    ds_write_b32 v14, v10 offset:32768''')
    for r in range(14): e(f'v_lshlrev_b32 v{16+2*r}, 16, v{112+r}\nv_and_b32 v{17+2*r}, 0xffff0000, v{112+r}')
    e('v_lshlrev_b32 v11, 2, v2\ns_waitcnt lgkmcnt(0)\ns_barrier')
    for i in range(8): e(f'ds_read_b32 v{80+i}, v11 offset:{32768+i*128}')
    for r in range(14,28): e(f'v_lshlrev_b32 v{16+2*r}, 16, v{112+r}\nv_and_b32 v{17+2*r}, 0xffff0000, v{112+r}')
    e('v_cndmask_b32 v90, 0, 1.0, s[48:49]\nv_cndmask_b32 v91, 0, 1.0, s[48:49]\ns_waitcnt lgkmcnt(0)')
    for i in (0,2,4,6): e(f'v_add_f32 v{80+i}, v{80+i}, v{81+i}')
    e('v_add_f32 v80, v80, v82\nv_add_f32 v84, v84, v86\nv_add_f32 v80, v80, v84')
    e('v_mul_f32 v80, 0xbb124925, v80\nv_mul_f32 v80, v80, v90\nv_mov_b32 v81, v80')
    for r in range(28): e(f'v_pk_fma_f32 v[{16+2*r}:{17+2*r}], v[{16+2*r}:{17+2*r}], v[90:91], v[80:81]')
    for r in range(28): e(f'v_cvt_pk_bf16_f32 v{112+r}, v{16+2*r}, v{17+2*r}')
    e('prep_nocenter:')
    xsig(e,'b')
    for k in range(8):
        if k==7: e('s_cmp_lt_u32 s38, 8\ns_cbranch_scc1 prep_fin')
        e(f'buffer_store_dwordx4 {R(112+4*k)}, v4, s[24:27], s35 offen sc1\ns_add_u32 s35, s35, s36')
    e('prep_fin:'); e.rt(4,True)
    e(f'''s_cmp_lt_u32 s2, 48
    s_cbranch_scc0 prep_done
    s_waitcnt vmcnt(0)
    s_barrier
    s_cmp_eq_u32 s20, 0
    s_cbranch_scc0 prep_done
    s_and_b32 s5, s2, 15
    s_lshl_b32 s5, s5, 8
    s_add_u32 s5, s5, {CNT+11*4096}
    s_mov_b64 exec, 1
    buffer_atomic_add v152, v1, s[24:27], s5 offen sc1
    s_mov_b64 exec, -1
    s_branch prep_done''')
    e(f'''prep_t1:
    s_cmp_ge_u32 s2, 160
    s_cbranch_scc1 prep_t2
    s_sub_u32 s41, s2, 48
    s_and_b32 s42, s41, 1
    s_lshr_b32 s41, s41, 1
    s_cmp_eq_u32 s42, 0
    s_cselect_b32 s28, s12, s14
    s_cselect_b32 s29, s13, s15
    s_and_b32 s29, s29, 0xffff
    s_mov_b32 s30, 1605632
    s_mov_b32 s32, 3584
    s_lshl_b32 s33, s41, 6
    s_mov_b32 s36, 2048
    s_mul_i32 s35, s41, 28
    s_add_u32 s35, s35, s34
    s_lshl_b32 s35, s35, 1
    s_add_u32 s35, s35, s42
    s_lshl_b32 s35, s35, 10
    s_add_u32 s35, s35, {WGU}
    s_branch prep_go
    prep_t2:
    s_mov_b32 s37, 0
    s_mov_b32 s32, 896
    s_cmp_ge_u32 s2, 174
    s_cbranch_scc1 prep_t3
    s_sub_u32 s41, s2, 160
    s_mov_b32 s28, s8
    s_and_b32 s29, s9, 0xffff
    s_mov_b32 s30, 401408
    s_lshl_b32 s33, s41, 6
    s_mov_b32 s38, 8
    s_mov_b32 s40, 1
    s_lshl_b32 s34, s20, 3
    s_lshl_b32 s35, s41, 5
    s_add_u32 s35, s35, s34
    s_lshl_b32 s35, s35, 10
    s_add_u32 s35, s35, {WO}
    s_branch prep_go
    prep_t3:
    s_sub_u32 s41, s2, 174
    s_and_b32 s42, s41, 3
    s_lshr_b32 s41, s41, 2
    s_mov_b32 s28, s16
    s_and_b32 s29, s17, 0xffff
    s_mov_b32 s30, 1605632
    s_lshl_b32 s33, s41, 6
    s_mul_i32 s42, s42, 28
    s_add_u32 s34, s34, s42
    s_mul_i32 s35, s41, 112
    s_add_u32 s35, s35, s34
    s_lshl_b32 s35, s35, 10
    s_add_u32 s35, s35, {WD}
    s_branch prep_go''')
    e('prep_idle:')
    e(f'''s_cmp_eq_u32 s2, 255
    s_cbranch_scc0 prep_nz
    v_mov_b32 v8, 0
    v_mov_b32 v9, 0
    v_mov_b32 v10, 0
    v_mov_b32 v11, 0
    v_lshlrev_b32 v12, 4, v0
    s_mov_b32 s41, {CNT}''')
    for i in range(12): e('buffer_store_dwordx4 v[8:11], v12, s[24:27], s41 offen sc1\ns_add_u32 s41, s41, 4096')
    e('''s_waitcnt vmcnt(0)
    s_barrier
    v_mov_b32 v9, 1
    buffer_store_dword v9, v8, s[52:55], 0 offen sc1
    prep_nz:''')
    e('s_waitcnt vmcnt(0)')
    xpart(e,'a'); xsig(e,'a'); e('s_branch prep_done')
    e('prep_done:')
    e.rt(5,True)
```

```python
from common import *
def xpart(e,u):
    e(f'''s_cmp_ge_u32 s58, 14
    s_cbranch_scc1 prep_nx2{u}
    s_mov_b32 s46, 0x3f803f80
    v_mov_b32 v152, 0
    v_mov_b32 v153, 0
    v_lshrrev_b32 v154, 2, v4''')
    for k in range(2):
        e(f'buffer_store_dwordx4 v[{144+4*k}:{147+4*k}], v4, s[24:27], s59 offen offset:{1024*k} sc1')
        for q in range(4): e(f'v_dot2_f32_bf16 v152, v{144+4*k+q}, s46, v152\nv_dot2_f32_bf16 v153, v{144+4*k+q}, v{144+4*k+q}, v153')
    e(f'''s_nop 4
    v_permlane32_swap_b32 v152, v153
    s_nop 1
    v_add_f32 v152, v152, v153
    buffer_store_dword v152, v154, s[24:27], s60 offen sc1
    prep_nx2{u}:
    buffer_load_dword v155, v1, s[52:55], 0 offen sc1''')
def xsig(e,u,first=''):
    e(f'''s_mov_b32 s5, 0x8000
    s_branch prep_flc{u}
    prep_fl{u}:
    buffer_load_dword v155, v1, s[52:55], 0 offen sc1
    prep_flc{u}:
    s_waitcnt vmcnt(0)
    v_readfirstlane_b32 s6, v155
    s_sub_u32 s5, s5, 1
    s_cbranch_scc1 prep_fld{u}
    s_cmp_eq_u32 s6, 0
    s_cbranch_scc1 prep_fl{u}
    prep_fld{u}:
    v_mov_b32 v152, 1
    s_barrier
    s_cmp_eq_u32 s20, 0
    s_cbranch_scc0 prep_sg{u}
    s_lshl_b32 s4, s21, 8
    s_add_u32 s4, s4, {CNT+10*4096}
    s_mov_b64 exec, 1
    {first}
    buffer_atomic_add v152, v1, s[24:27], s4 offen sc1
    s_mov_b64 exec, -1
    prep_sg{u}:''')
def gen(e):
    e('''s_load_dwordx4 s[4:7], s[0:1], 0
    s_load_dwordx2 s[8:9], s[0:1], 16
    s_load_dwordx4 s[12:15], s[0:1], 32
    s_load_dwordx2 s[16:17], s[0:1], 48
    s_load_dwordx2 s[18:19], s[0:1], 72
    s_load_dwordx2 s[10:11], s[0:1], 64
    s_cmp_ge_u32 s2, 256
    s_cbranch_scc1 mega_end
    s_and_b32 s41, s2, 7
    s_lshr_b32 s42, s2, 3
    s_lshr_b32 s21, s41, 1
    s_lshl_b32 s21, s21, 2
    s_lshr_b32 s43, s42, 3
    s_add_u32 s21, s21, s43
    s_and_b32 s23, s41, 1
    s_and_b32 s22, s42, 7
    s_lshl_b32 s57, s23, 3
    s_add_u32 s57, s57, s22
    v_lshrrev_b32 v1, 6, v0
    v_and_b32 v2, 31, v0
    v_readfirstlane_b32 s20, v1
    v_bfe_u32 v3, v0, 5, 1
    v_and_b32 v4, 63, v0
    v_lshlrev_b32 v4, 4, v4
    s_waitcnt lgkmcnt(0)''')
    e.srd(24,18,WS_BYTES)
    e.srd(52,10,256); e.srd(28,4,1835008)
    e(f'''s_lshr_b32 s41, s57, 2
    s_lshl_b32 s42, s21, 2
    s_add_u32 s41, s41, s42
    s_and_b32 s42, s57, 3
    s_lshl_b32 s42, s42, 2
    s_add_u32 s58, s42, s20
    s_mul_i32 s59, s41, 28672
    s_lshl_b32 s43, s58, 6
    s_add_u32 s42, s59, s43
    s_lshl_b32 s43, s58, 11
    s_add_u32 s59, s59, s43
    s_lshl_b32 s60, s41, 12
    s_lshl_b32 s43, s58, 8
    s_add_u32 s60, s60, s43
    s_add_u32 s60, s60, {ST[0]}
    v_mul_u32_u24 v5, 896, v2
    v_lshl_add_u32 v5, v3, 3, v5
    s_cmp_ge_u32 s58, 14
    s_cbranch_scc1 prep_nx''')
    for k in range(2):
        e(f'buffer_load_dwordx2 v[{144+4*k}:{145+4*k}], v5, s[28:31], s42 offen offset:{32*k}\nbuffer_load_dwordx2 v[{146+4*k}:{147+4*k}], v5, s[28:31], s42 offen offset:{32*k+16}')
    e('prep_nx:')
    e('v_mov_b32 v1, 0\ns_cmp_ge_u32 s2, 230\ns_cbranch_scc1 prep_idle')
    e(f'''s_mov_b32 s31, 0x20000
    s_mov_b32 s37, 1
    s_mov_b32 s38, 7
    s_mov_b32 s39, 32
    s_mov_b32 s40, 0
    s_mov_b32 s50, 0
    s_mov_b32 s36, 1024
    s_mul_i32 s34, s20, 7
    s_cmp_ge_u32 s2, 48
    s_cbranch_scc1 prep_t1
    s_mov_b32 s28, s6
    s_and_b32 s29, s7, 0xffff
    s_mov_b32 s30, 1204224
    s_mov_b32 s32, 2688
    s_mul_i32 s33, s2, 56
    s_and_b32 s50, s33, 8
    s_sub_u32 s33, s33, s50
    s_mov_b32 s39, 28
    s_mov_b32 s36, 3072
    s_and_b32 s41, s2, 15
    s_lshr_b32 s42, s2, 4
    s_mul_i32 s35, s41, 28
    s_add_u32 s35, s35, s34
    s_mul_i32 s35, s35, 3
    s_add_u32 s35, s35, s42
    s_lshl_b32 s35, s35, 10
    s_add_u32 s35, s35, {WQKV}
    prep_go:''')
    e('''v_bfe_u32 v5, v0, 2, 4
    v_mul_lo_u32 v5, v5, s32
    v_and_b32 v6, 3, v0
    v_lshl_add_u32 v5, v6, 4, v5
    v_add_u32 v5, s33, v5
    s_lshl_b32 s47, s20, 13
    v_add_u32 v7, s47, v4''')
    for k in range(8):
        if k==7: e('s_cmp_lt_u32 s38, 8\ns_cbranch_scc1 prep_ld_done')
        e(f's_add_u32 s41, s34, {k}\ns_lshl_b32 s42, s41, 4\ns_lshr_b32 s43, s41, 1\ns_lshl_b32 s43, s43, 2\ns_mul_i32 s43, s43, s40\ns_sub_u32 s42, s42, s43\ns_mul_i32 s42, s42, s32')
        e(f'buffer_load_dwordx4 {R(80+4*k)}, v5, s[28:31], s42 offen')
    e('prep_ld_done:'); e.rt(2,True)
    e('''v_bfe_u32 v8, v0, 2, 2
    v_lshl_add_u32 v8, v3, 2, v8
    v_lshlrev_b32 v8, 6, v8
    v_bfe_u32 v9, v0, 4, 1
    v_lshl_add_u32 v8, v9, 5, v8
    v_lshl_add_u32 v8, v6, 3, v8
    s_add_u32 s50, s50, s47
    v_add_u32 v8, s50, v8
    v_cmp_gt_u32 s[48:49], s39, v2
    v_cmp_ne_u32 vcc, 0, v3
    s_cmp_eq_u32 s40, 1
    s_cselect_b64 s[44:45], vcc, 0
    v_mov_b32 v9, 0
    s_waitcnt vmcnt(0)''')
    e.rt(3,True)
    xpart(e,'b')
    for k in range(8): e(f'ds_write_b128 v7, {R(80+4*k)} offset:{k*1024}')
    for k in range(8):
        e(f'ds_read_b64_tr_b16 v[{112+4*k}:{113+4*k}], v8 offset:{k*1024}\nds_read_b64_tr_b16 v[{114+4*k}:{115+4*k}], v8 offset:{k*1024+512}')
    e('s_waitcnt lgkmcnt(0)')
    for k in range(1,8,2): e(f'v_cndmask_b32 v{114+4*k}, v{114+4*k}, v9, s[44:45]\nv_cndmask_b32 v{115+4*k}, v{115+4*k}, v9, s[44:45]')
    e('s_cmp_eq_u32 s37, 0\ns_cbranch_scc1 prep_nocenter')
    e('s_mov_b32 s46, 0x3f803f80')
    for c in range(4): e(f'v_mov_b32 v{10+c}, 0')
    for r in range(28): e(f'v_dot2_f32_bf16 v{10+r%4}, v{112+r}, s46, v{10+r%4}')
    e('''v_lshlrev_b32 v14, 2, v0
    s_nop 2
    v_add_f32 v10, v10, v11
    v_add_f32 v12, v12, v13
    v_add_f32 v10, v10, v12
    ds_write_b32 v14, v10 offset:32768''')
    for r in range(14): e(f'v_lshlrev_b32 v{16+2*r}, 16, v{112+r}\nv_and_b32 v{17+2*r}, 0xffff0000, v{112+r}')
    e('v_lshlrev_b32 v11, 2, v2\ns_waitcnt lgkmcnt(0)\ns_barrier')
    for i in range(8): e(f'ds_read_b32 v{80+i}, v11 offset:{32768+i*128}')
    for r in range(14,28): e(f'v_lshlrev_b32 v{16+2*r}, 16, v{112+r}\nv_and_b32 v{17+2*r}, 0xffff0000, v{112+r}')
    e('v_cndmask_b32 v90, 0, 1.0, s[48:49]\nv_cndmask_b32 v91, 0, 1.0, s[48:49]\ns_waitcnt lgkmcnt(0)')
    for i in (0,2,4,6): e(f'v_add_f32 v{80+i}, v{80+i}, v{81+i}')
    e('v_add_f32 v80, v80, v82\nv_add_f32 v84, v84, v86\nv_add_f32 v80, v80, v84')
    e('v_mul_f32 v80, 0xbb124925, v80\nv_mul_f32 v80, v80, v90\nv_mov_b32 v81, v80')
    for r in range(28): e(f'v_pk_fma_f32 v[{16+2*r}:{17+2*r}], v[{16+2*r}:{17+2*r}], v[90:91], v[80:81]')
    for r in range(28): e(f'v_cvt_pk_bf16_f32 v{112+r}, v{16+2*r}, v{17+2*r}')
    e('prep_nocenter:')
    xsig(e,'b')
    for k in range(8):
        if k==7: e('s_cmp_lt_u32 s38, 8\ns_cbranch_scc1 prep_fin')
        e(f'buffer_store_dwordx4 {R(112+4*k)}, v4, s[24:27], s35 offen sc1\ns_add_u32 s35, s35, s36')
    e('prep_fin:'); e.rt(4,True)
    e(f'''s_cmp_lt_u32 s2, 48
    s_cbranch_scc0 prep_done
    s_waitcnt vmcnt(0)
    s_barrier
    s_cmp_eq_u32 s20, 0
    s_cbranch_scc0 prep_done
    s_and_b32 s5, s2, 15
    s_lshl_b32 s5, s5, 8
    s_add_u32 s5, s5, {CNT+11*4096}
    s_mov_b64 exec, 1
    buffer_atomic_add v152, v1, s[24:27], s5 offen sc1
    s_mov_b64 exec, -1
    s_branch prep_done''')
    e(f'''prep_t1:
    s_cmp_ge_u32 s2, 160
    s_cbranch_scc1 prep_t2
    s_sub_u32 s41, s2, 48
    s_and_b32 s42, s41, 1
    s_lshr_b32 s41, s41, 1
    s_cmp_eq_u32 s42, 0
    s_cselect_b32 s28, s12, s14
    s_cselect_b32 s29, s13, s15
    s_and_b32 s29, s29, 0xffff
    s_mov_b32 s30, 1605632
    s_mov_b32 s32, 3584
    s_lshl_b32 s33, s41, 6
    s_mov_b32 s36, 2048
    s_mul_i32 s35, s41, 28
    s_add_u32 s35, s35, s34
    s_lshl_b32 s35, s35, 1
    s_add_u32 s35, s35, s42
    s_lshl_b32 s35, s35, 10
    s_add_u32 s35, s35, {WGU}
    s_branch prep_go
    prep_t2:
    s_mov_b32 s37, 0
    s_mov_b32 s32, 896
    s_cmp_ge_u32 s2, 174
    s_cbranch_scc1 prep_t3
    s_sub_u32 s41, s2, 160
    s_mov_b32 s28, s8
    s_and_b32 s29, s9, 0xffff
    s_mov_b32 s30, 401408
    s_lshl_b32 s33, s41, 6
    s_mov_b32 s38, 8
    s_mov_b32 s40, 1
    s_lshl_b32 s34, s20, 3
    s_lshl_b32 s35, s41, 5
    s_add_u32 s35, s35, s34
    s_lshl_b32 s35, s35, 10
    s_add_u32 s35, s35, {WO}
    s_branch prep_go
    prep_t3:
    s_sub_u32 s41, s2, 174
    s_and_b32 s42, s41, 3
    s_lshr_b32 s41, s41, 2
    s_mov_b32 s28, s16
    s_and_b32 s29, s17, 0xffff
    s_mov_b32 s30, 1605632
    s_lshl_b32 s33, s41, 6
    s_mul_i32 s42, s42, 28
    s_add_u32 s34, s34, s42
    s_mul_i32 s35, s41, 112
    s_add_u32 s35, s35, s34
    s_lshl_b32 s35, s35, 10
    s_add_u32 s35, s35, {WD}
    s_branch prep_go''')
    e('prep_idle:')
    e(f'''s_cmp_eq_u32 s2, 255
    s_cbranch_scc0 prep_nz
    v_mov_b32 v8, 0
    v_mov_b32 v9, 0
    v_mov_b32 v10, 0
    v_mov_b32 v11, 0
    v_lshlrev_b32 v12, 4, v0
    s_mov_b32 s41, {CNT}''')
    for i in range(12): e('buffer_store_dwordx4 v[8:11], v12, s[24:27], s41 offen sc1\ns_add_u32 s41, s41, 4096')
    e('''s_waitcnt vmcnt(0)
    s_barrier
    v_mov_b32 v9, 1
    buffer_store_dword v9, v8, s[52:55], 0 offen sc1
    prep_nz:''')
    e('s_waitcnt vmcnt(0)')
    xpart(e,'a'); xsig(e,'a'); e('s_branch prep_done')
    e('prep_done:')
    e.rt(5,True)
```

```python
from common import *
def xpart(e,u):
    e(f'''s_cmp_ge_u32 s58, 14
    s_cbranch_scc1 prep_nx2{u}
    s_mov_b32 s46, 0x3f803f80
    v_mov_b32 v152, 0
    v_mov_b32 v153, 0
    v_lshrrev_b32 v154, 2, v4''')
    for k in range(2):
        e(f'buffer_store_dwordx4 v[{144+4*k}:{147+4*k}], v4, s[24:27], s59 offen offset:{1024*k} sc1')
        for q in range(4): e(f'v_dot2_f32_bf16 v152, v{144+4*k+q}, s46, v152\nv_dot2_f32_bf16 v153, v{144+4*k+q}, v{144+4*k+q}, v153')
    e(f'''s_nop 4
    v_permlane32_swap_b32 v152, v153
    s_nop 1
    v_add_f32 v152, v152, v153
    buffer_store_dword v152, v154, s[24:27], s60 offen sc1
    prep_nx2{u}:
    buffer_load_dword v155, v1, s[52:55], 0 offen sc1''')
def xsig(e,u,first=''):
    e(f'''s_mov_b32 s5, 0x8000
    s_branch prep_flc{u}
    prep_fl{u}:
    buffer_load_dword v155, v1, s[52:55], 0 offen sc1
    prep_flc{u}:
    s_waitcnt vmcnt(0)
    v_readfirstlane_b32 s6, v155
    s_sub_u32 s5, s5, 1
    s_cbranch_scc1 prep_fld{u}
    s_cmp_eq_u32 s6, 0
    s_cbranch_scc1 prep_fl{u}
    prep_fld{u}:
    v_mov_b32 v152, 1
    s_barrier
    s_cmp_eq_u32 s20, 0
    s_cbranch_scc0 prep_sg{u}
    s_lshl_b32 s4, s21, 8
    s_add_u32 s4, s4, {CNT+10*4096}
    s_mov_b64 exec, 1
    {first}
    buffer_atomic_add v152, v1, s[24:27], s4 offen sc1
    s_mov_b64 exec, -1
    prep_sg{u}:''')
def gen(e):
    e('''s_load_dwordx4 s[4:7], s[0:1], 0
    s_load_dwordx2 s[8:9], s[0:1], 16
    s_load_dwordx4 s[12:15], s[0:1], 32
    s_load_dwordx2 s[16:17], s[0:1], 48
    s_load_dwordx2 s[18:19], s[0:1], 72
    s_load_dwordx2 s[10:11], s[0:1], 64
    s_cmp_ge_u32 s2, 256
    s_cbranch_scc1 mega_end
    s_and_b32 s41, s2, 7
    s_lshr_b32 s42, s2, 3
    s_lshr_b32 s21, s41, 1
    s_lshl_b32 s21, s21, 2
    s_lshr_b32 s43, s42, 3
    s_add_u32 s21, s21, s43
    s_and_b32 s23, s41, 1
    s_and_b32 s22, s42, 7
    s_lshl_b32 s57, s23, 3
    s_add_u32 s57, s57, s22
    v_lshrrev_b32 v1, 6, v0
    v_and_b32 v2, 31, v0
    v_readfirstlane_b32 s20, v1
    v_bfe_u32 v3, v0, 5, 1
    v_and_b32 v4, 63, v0
    v_lshlrev_b32 v4, 4, v4
    s_waitcnt lgkmcnt(0)''')
    e.srd(24,18,WS_BYTES)
    e.srd(52,10,256); e.srd(28,4,1835008)
    e(f'''s_lshr_b32 s41, s57, 2
    s_lshl_b32 s42, s21, 2
    s_add_u32 s41, s41, s42
    s_and_b32 s42, s57, 3
    s_lshl_b32 s42, s42, 2
    s_add_u32 s58, s42, s20
    s_mul_i32 s59, s41, 28672
    s_lshl_b32 s43, s58, 6
    s_add_u32 s42, s59, s43
    s_lshl_b32 s43, s58, 11
    s_add_u32 s59, s59, s43
    s_lshl_b32 s60, s41, 12
    s_lshl_b32 s43, s58, 8
    s_add_u32 s60, s60, s43
    s_add_u32 s60, s60, {ST[0]}
    v_mul_u32_u24 v5, 896, v2
    v_lshl_add_u32 v5, v3, 3, v5
    s_cmp_ge_u32 s58, 14
    s_cbranch_scc1 prep_nx''')
    for k in range(2):
        e(f'buffer_load_dwordx2 v[{144+4*k}:{145+4*k}], v5, s[28:31], s42 offen offset:{32*k}\nbuffer_load_dwordx2 v[{146+4*k}:{147+4*k}], v5, s[28:31], s42 offen offset:{32*k+16}')
    e('prep_nx:')
    e('v_mov_b32 v1, 0\ns_cmp_ge_u32 s2, 230\ns_cbranch_scc1 prep_idle')
    e(f'''s_mov_b32 s31, 0x20000
    s_mov_b32 s37, 1
    s_mov_b32 s38, 7
    s_mov_b32 s39, 32
    s_mov_b32 s40, 0
    s_mov_b32 s50, 0
    s_mov_b32 s36, 1024
    s_mul_i32 s34, s20, 7
    s_cmp_ge_u32 s2, 48
    s_cbranch_scc1 prep_t1
    s_mov_b32 s28, s6
    s_and_b32 s29, s7, 0xffff
    s_mov_b32 s30, 1204224
    s_mov_b32 s32, 2688
    s_mul_i32 s33, s2, 56
    s_and_b32 s50, s33, 8
    s_sub_u32 s33, s33, s50
    s_mov_b32 s39, 28
    s_mov_b32 s36, 3072
    s_and_b32 s41, s2, 15
    s_lshr_b32 s42, s2, 4
    s_mul_i32 s35, s41, 28
    s_add_u32 s35, s35, s34
    s_mul_i32 s35, s35, 3
    s_add_u32 s35, s35, s42
    s_lshl_b32 s35, s35, 10
    s_add_u32 s35, s35, {WQKV}
    prep_go:''')
    e('''v_bfe_u32 v5, v0, 2, 4
    v_mul_lo_u32 v5, v5, s32
    v_and_b32 v6, 3, v0
    v_lshl_add_u32 v5, v6, 4, v5
    v_add_u32 v5, s33, v5
    s_lshl_b32 s47, s20, 13
    v_add_u32 v7, s47, v4''')
    for k in range(8):
        if k==7: e('s_cmp_lt_u32 s38, 8\ns_cbranch_scc1 prep_ld_done')
        e(f's_add_u32 s41, s34, {k}\ns_lshl_b32 s42, s41, 4\ns_lshr_b32 s43, s41, 1\ns_lshl_b32 s43, s43, 2\ns_mul_i32 s43, s43, s40\ns_sub_u32 s42, s42, s43\ns_mul_i32 s42, s42, s32')
        e(f'buffer_load_dwordx4 {R(80+4*k)}, v5, s[28:31], s42 offen')
    e('prep_ld_done:'); e.rt(2,True)
    e('''v_bfe_u32 v8, v0, 2, 2
    v_lshl_add_u32 v8, v3, 2, v8
    v_lshlrev_b32 v8, 6, v8
    v_bfe_u32 v9, v0, 4, 1
    v_lshl_add_u32 v8, v9, 5, v8
    v_lshl_add_u32 v8, v6, 3, v8
    s_add_u32 s50, s50, s47
    v_add_u32 v8, s50, v8
    v_cmp_gt_u32 s[48:49], s39, v2
    v_cmp_ne_u32 vcc, 0, v3
    s_cmp_eq_u32 s40, 1
    s_cselect_b64 s[44:45], vcc, 0
    v_mov_b32 v9, 0
    s_waitcnt vmcnt(0)''')
    e.rt(3,True)
    xpart(e,'b')
    for k in range(8): e(f'ds_write_b128 v7, {R(80+4*k)} offset:{k*1024}')
    for k in range(8):
        e(f'ds_read_b64_tr_b16 v[{112+4*k}:{113+4*k}], v8 offset:{k*1024}\nds_read_b64_tr_b16 v[{114+4*k}:{115+4*k}], v8 offset:{k*1024+512}')
    e('s_waitcnt lgkmcnt(0)')
    for k in range(1,8,2): e(f'v_cndmask_b32 v{114+4*k}, v{114+4*k}, v9, s[44:45]\nv_cndmask_b32 v{115+4*k}, v{115+4*k}, v9, s[44:45]')
    e('s_cmp_eq_u32 s37, 0\ns_cbranch_scc1 prep_nocenter')
    e('s_mov_b32 s46, 0x3f803f80')
    for c in range(4): e(f'v_mov_b32 v{10+c}, 0')
    for r in range(28): e(f'v_cndmask_b32 v{112+r}, v9, v{112+r}, s[48:49]')
    for r in range(28): e(f'v_dot2_f32_bf16 v{10+r%4}, v{112+r}, s46, v{10+r%4}')
    e('''v_lshlrev_b32 v14, 2, v0
    s_nop 2
    v_add_f32 v10, v10, v11
    v_add_f32 v12, v12, v13
    v_add_f32 v10, v10, v12
    ds_write_b32 v14, v10 offset:32768''')
    for r in range(14): e(f'v_lshlrev_b32 v{16+2*r}, 16, v{112+r}\nv_and_b32 v{17+2*r}, 0xffff0000, v{112+r}')
    e('v_lshlrev_b32 v11, 2, v2\ns_waitcnt lgkmcnt(0)\ns_barrier')
    for i in range(8): e(f'ds_read_b32 v{80+i}, v11 offset:{32768+i*128}')
    for r in range(14,28): e(f'v_lshlrev_b32 v{16+2*r}, 16, v{112+r}\nv_and_b32 v{17+2*r}, 0xffff0000, v{112+r}')
    e('s_waitcnt lgkmcnt(0)')
    for i in (0,2,4,6): e(f'v_add_f32 v{80+i}, v{80+i}, v{81+i}')
    e('v_add_f32 v80, v80, v82\nv_add_f32 v84, v84, v86\nv_add_f32 v80, v80, v84')
    e('v_mul_f32 v81, 0xbb124925, v80\nv_mul_f32 v80, 0xbb124925, v80')
    for r in range(28): e(f'v_pk_add_f32 v[{16+2*r}:{17+2*r}], v[{16+2*r}:{17+2*r}], v[80:81]')
    e('v_mov_b32 v104, 0')
    for p in range(4):
        n=7 if p<3 else 6
        for k in range(7):
            a=16+8*k+2*p
            if p>0: e(f'v_add_f32 v{a}, v{a}, v{88+k}')
        for k in range(7): e(f'v_cvt_pk_bf16_f32 v{112+4*k+p}, v{16+8*k+2*p}, v{16+8*k+2*p}')
        for k in range(7): e(f'v_and_b32 v{96+k}, 0xffff0000, v{112+4*k+p}')
        for k in range(7): e(f'v_sub_f32 v{96+k}, v{16+8*k+2*p}, v{96+k}')
        for k in range(7): e(f'v_add_f32 v{17+8*k+2*p}, v{17+8*k+2*p}, v{96+k}')
        for k in range(n): e(f'v_cvt_pk_bf16_f32 v{112+4*k+p}, v{16+8*k+2*p}, v{17+8*k+2*p}')
        for k in range(n): e(f'v_and_b32 v{88+k}, 0xffff0000, v{112+4*k+p}')
        for k in range(n): e(f'v_sub_f32 v{88+k}, v{17+8*k+2*p}, v{88+k}')
    e('''v_add_f32 v88, v88, v89
    v_add_f32 v90, v90, v91
    v_add_f32 v92, v92, v93
    v_add_f32 v88, v88, v90
    v_add_f32 v71, v71, v92
    v_add_f32 v71, v71, v88
    v_cvt_pk_bf16_f32 v139, v70, v71
    v_and_b32 v88, 0xffff0000, v139
    v_sub_f32 v88, v71, v88
    s_nop 1
    v_permlane32_swap_b32 v104, v88
    s_nop 1
    v_add_f32 v71, v71, v104
    v_cvt_pk_bf16_f32 v139, v70, v71''')
    e('prep_nocenter:')
    xsig(e,'b')
    for k in range(8):
        if k==7: e('s_cmp_lt_u32 s38, 8\ns_cbranch_scc1 prep_fin')
        e(f'buffer_store_dwordx4 {R(112+4*k)}, v4, s[24:27], s35 offen sc1\ns_add_u32 s35, s35, s36')
    e('prep_fin:'); e.rt(4,True)
    e(f'''s_cmp_lt_u32 s2, 48
    s_cbranch_scc0 prep_done
    s_waitcnt vmcnt(0)
    s_barrier
    s_cmp_eq_u32 s20, 0
    s_cbranch_scc0 prep_done
    s_and_b32 s5, s2, 15
    s_lshl_b32 s5, s5, 8
    s_add_u32 s5, s5, {CNT+11*4096}
    s_mov_b64 exec, 1
    buffer_atomic_add v152, v1, s[24:27], s5 offen sc1
    s_mov_b64 exec, -1
    s_branch prep_done''')
    e(f'''prep_t1:
    s_cmp_ge_u32 s2, 160
    s_cbranch_scc1 prep_t2
    s_sub_u32 s41, s2, 48
    s_and_b32 s42, s41, 1
    s_lshr_b32 s41, s41, 1
    s_cmp_eq_u32 s42, 0
    s_cselect_b32 s28, s12, s14
    s_cselect_b32 s29, s13, s15
    s_and_b32 s29, s29, 0xffff
    s_mov_b32 s30, 1605632
    s_mov_b32 s32, 3584
    s_lshl_b32 s33, s41, 6
    s_mov_b32 s36, 2048
    s_mul_i32 s35, s41, 28
    s_add_u32 s35, s35, s34
    s_lshl_b32 s35, s35, 1
    s_add_u32 s35, s35, s42
    s_lshl_b32 s35, s35, 10
    s_add_u32 s35, s35, {WGU}
    s_branch prep_go
    prep_t2:
    s_mov_b32 s37, 0
    s_mov_b32 s32, 896
    s_cmp_ge_u32 s2, 174
    s_cbranch_scc1 prep_t3
    s_sub_u32 s41, s2, 160
    s_mov_b32 s28, s8
    s_and_b32 s29, s9, 0xffff
    s_mov_b32 s30, 401408
    s_lshl_b32 s33, s41, 6
    s_mov_b32 s38, 8
    s_mov_b32 s40, 1
    s_lshl_b32 s34, s20, 3
    s_lshl_b32 s35, s41, 5
    s_add_u32 s35, s35, s34
    s_lshl_b32 s35, s35, 10
    s_add_u32 s35, s35, {WO}
    s_branch prep_go
    prep_t3:
    s_sub_u32 s41, s2, 174
    s_and_b32 s42, s41, 3
    s_lshr_b32 s41, s41, 2
    s_mov_b32 s28, s16
    s_and_b32 s29, s17, 0xffff
    s_mov_b32 s30, 1605632
    s_lshl_b32 s33, s41, 6
    s_mul_i32 s42, s42, 28
    s_add_u32 s34, s34, s42
    s_mul_i32 s35, s41, 112
    s_add_u32 s35, s35, s34
    s_lshl_b32 s35, s35, 10
    s_add_u32 s35, s35, {WD}
    s_branch prep_go''')
    e('prep_idle:')
    e(f'''s_cmp_eq_u32 s2, 255
    s_cbranch_scc0 prep_nz
    v_mov_b32 v8, 0
    v_mov_b32 v9, 0
    v_mov_b32 v10, 0
    v_mov_b32 v11, 0
    v_lshlrev_b32 v12, 4, v0
    s_mov_b32 s41, {CNT}''')
    for i in range(12): e('buffer_store_dwordx4 v[8:11], v12, s[24:27], s41 offen sc1\ns_add_u32 s41, s41, 4096')
    e('''s_waitcnt vmcnt(0)
    s_barrier
    v_mov_b32 v9, 1
    buffer_store_dword v9, v8, s[52:55], 0 offen sc1
    prep_nz:''')
    e('s_waitcnt vmcnt(0)')
    xpart(e,'a'); xsig(e,'a'); e('s_branch prep_done')
    e('prep_done:')
    e.rt(5,True)
```
